```python
import torch

def _softmax(x, axis=-1):
    return torch.softmax(x, dim=axis)
def _gelu(x):
    return torch.nn.functional.gelu(x, approximate="tanh")
def _silu(x):
    return torch.nn.functional.silu(x)
def _sigmoid(x):
    return torch.sigmoid(x)
def _layernorm(x, axis=-1, eps=1e-5):
    m = x.mean(dim=axis, keepdim=True)
    v = x.var(dim=axis, keepdim=True, unbiased=False)
    return (x - m) / torch.sqrt(v + eps)
def _scatter_add(tgt, idx, src, axis=0):
    return tgt.clone().index_add_(axis, idx, src)
def _segment_sum(src, seg, n):
    out = torch.zeros((n,) + src.shape[1:], dtype=src.dtype)
    return out.index_add_(0, seg, src)
def _pad(x, pw):
    flat = tuple(v for pair in reversed(pw) for v in pair)
    return torch.nn.functional.pad(x, flat)

kernel_name = 'concat_heads__ssm_conv_h3__sliding_block__prompt'

def setup_inputs():

    _w = (lambda a: (lambda t: t.to(torch.bfloat16) if t.is_floating_point() else t)(torch.as_tensor(a)))
    def _A_setup():
        B, S, D = 1, 2048, 1024
        ks = 4
        return {
            "q": _w((lambda *s: torch.randn(*s, dtype=torch.bfloat16) * 0.05)(B, S, D)),
            "k": _w((lambda *s: torch.randn(*s, dtype=torch.bfloat16) * 1.6)(B, S, D)),
            "v": _w((lambda *s: torch.randn(*s, dtype=torch.bfloat16) * 0.8)(B, S, D)),
            "shift_k": _w((lambda *s: torch.randn(*s, dtype=torch.bfloat16) * 1.6)(D, ks) * 0.5),
            "ssm_k": _w((lambda *s: torch.randn(*s, dtype=torch.bfloat16) * 1.6)(D, S) * (1.0 / S ** 0.5)),
            "ssm_D": _w((lambda *s: torch.randn(*s, dtype=torch.bfloat16) * 0.8)(D)),
        }
    _A_in = _A_setup()

    def _B_setup():
        B, S, D = 1, 2048, 1024
        return {
            "x": _w((lambda *s: torch.randn(*s, dtype=torch.bfloat16) * 0.2)(B, S, D)),
            "wqkv": _w((lambda *s: torch.randn(*s, dtype=torch.bfloat16) * 0.2)(D, 3 * D)),
            "wo": _w((lambda *s: torch.randn(*s, dtype=torch.bfloat16) * 0.05)(D, D)),
        }
    _B_in = _B_setup()

    return {
        "A_q": _A_in["q"],
        "A_k": _A_in["k"],
        "A_v": _A_in["v"],
        "A_shift_k": _A_in["shift_k"],
        "A_ssm_k": _A_in["ssm_k"],
        "A_ssm_D": _A_in["ssm_D"],
        "B_x": _B_in["x"],
        "B_wqkv": _B_in["wqkv"],
        "B_wo": _B_in["wo"],
    }

def reference(A_q, A_k, A_v, A_shift_k, A_ssm_k, A_ssm_D, B_x, B_wqkv, B_wo):
    def _A_ref(q, k, v, shift_k, ssm_k, ssm_D):
        B, S, D = q.shape
        ks = shift_k.shape[-1]
        k_pad = _pad(k, ((0, 0), (ks - 1, 0), (0, 0)))
        k_shift = torch.zeros_like(k)
        for t in range(ks):
            k_shift = k_shift + k_pad[:, t:t + S, :] * shift_k[:, ks - 1 - t][None, None, :]
        kv = k_shift * v
        L = 2 * S
        kv_pad = _pad(kv, ((0, 0), (0, S), (0, 0)))
        kf_pad = _pad(ssm_k, ((0, 0), (0, S)))
        kv_f = (lambda x, axes=(-2,-1): torch.fft.rfft2(x.float(), dim=axes))(kv_pad[:, None, :, :], axes=(1, 2))
        kf_f = (lambda x, axes=(-2,-1): torch.fft.rfft2(x.float(), dim=axes))(kf_pad[:, None, :], axes=(1, 2))
        kf_f = (lambda x, *d: x.permute(*d))(kf_f, 1, 2, 0)
        y_f = kv_f * kf_f[None, :, :, :]
        y = (lambda x, s, axes=(-2,-1): torch.fft.irfft2(x, s=s, dim=axes).to(torch.bfloat16))(y_f, (1, L), axes=(1, 2))[:, 0, :S, :]
        y = y + kv * ssm_D[None, None, :]
        return q * y

    def _B_ref(x, wqkv, wo):
        B, S, D = x.shape
        H = 32; Dh = D // H; W = 256
        qkv = (lambda x, *d: x.permute(*d))((x @ wqkv).reshape(B, S, 3, H, Dh), 2, 0, 3, 1, 4)
        q, k, v = qkv[0], qkv[1], qkv[2]
        scores = torch.einsum("bhqd,bhkd->bhqk", q, k) * (Dh ** -0.5)
        idx = torch.arange(S)
        mask = (idx[:, None] - idx[None, :] >= 0) & (idx[:, None] - idx[None, :] < W)
        scores = torch.where(mask[None, None], scores, -1e9)
        p = _softmax(scores, axis=-1)
        o = torch.einsum("bhqk,bhkd->bhqd", p, v)
        return (lambda x, *d: x.permute(*d))(o, 0, 2, 1, 3).reshape(B, S, D) @ wo

    a = _A_ref(A_q, A_k, A_v, A_shift_k, A_ssm_k, A_ssm_D)
    b = _B_ref(B_x, B_wqkv, B_wo)
    return torch.concatenate([a, b], axis=-1)
```

```python
import re

def v(i, n=1):
    return f"v{i}" if n == 1 else f"v[{i}:{i+n-1}]"
def s(i, n=1):
    return f"s{i}" if n == 1 else f"s[{i}:{i+n-1}]"

_REG = re.compile(r"\b([vsa])(\d+)\b|\b([vsa])\[(\d+):(\d+)\]|\b(vcc|exec|m0|scc)\b")

def regs_of(text):
    out = []
    for m in _REG.finditer(text):
        if m.group(1):
            out.append((m.group(1), int(m.group(2))))
        elif m.group(3):
            out += [(m.group(3), i) for i in range(int(m.group(4)), int(m.group(5)) + 1)]
        else:
            out.append((m.group(6), 0))
    return out

TRANS = ("v_exp_f32", "v_log_f32", "v_rcp_f32", "v_rsq_f32", "v_sqrt_f32", "v_sin_f32", "v_cos_f32")

class Ins:
    def __init__(self, text):
        self.text = text
        t = text.split(";")[0].strip()
        self.label = t.endswith(":")
        self.op = t.split()[0] if t and not self.label else ""
        self.rest = t[len(self.op):].strip()
        self.ops = [o.strip() for o in self._split(self.rest)]
        self.classify()
    @staticmethod
    def _split(r):
        out, depth, cur = [], 0, ""
        for ch in r:
            if ch in "[(": depth += 1
            if ch in "])": depth -= 1
            if ch == "," and depth == 0:
                out.append(cur); cur = ""
            else:
                cur += ch
        if cur.strip(): out.append(cur)
        return out
    def classify(self):
        op, ops = self.op, self.ops
        self.wr, self.rd = [], []
        self.kind = "other"
        self.mfma_passes = 0
        if self.label or not op or op.startswith("."):
            self.kind = "none"; return
        R = regs_of
        if op.startswith("v_mfma"):
            self.kind = "mfma"
            self.mfma_passes = 8 if "32x32" in op else 4
            self.wr = R(ops[0]); self.a = R(ops[1]); self.b = R(ops[2]); self.c = R(ops[3].split()[0])
            self.rd = self.a + self.b + self.c
        elif op.startswith("v_"):
            self.kind = "valu"
            if op.startswith("v_cmp"):
                self.wr = R(ops[0]); self.rd = sum((R(o) for o in ops[1:]), [])
                if op.startswith("v_cmpx"): self.wr += [("exec", 0)]
            elif op.startswith("v_permlane") and "swap" in op:
                self.wr = R(ops[0]) + R(ops[1]); self.rd = list(self.wr)
            elif op in ("v_add_co_u32", "v_sub_co_u32", "v_addc_co_u32", "v_subb_co_u32", "v_add_co_u32_e32", "v_addc_co_u32_e32"):
                self.wr = R(ops[0]) + R(ops[1]); self.rd = sum((R(o) for o in ops[2:]), [])
            elif op == "v_nop":
                pass
            else:
                self.wr = R(ops[0]); self.rd = sum((R(o) for o in ops[1:]), [])
                if op.startswith("v_fmac") or op.startswith("v_pk_fmac") or "dpp" in self.rest or op.endswith("_dpp") or op.startswith("v_writelane"):
                    self.rd += self.wr
                if op.startswith("v_cndmask") and len(ops) == 3: self.rd.append(("vcc", 0))
            self.dpp = ("quad_perm" in self.rest or "row_" in self.rest or "wave_" in self.rest)
        elif op.startswith("buffer_") or op.startswith("global_"):
            self.kind = "vmem"
            lds = re.search(r"\blds\b", self.rest) is not None
            self.lds_dma = lds
            if "load" in op and not lds:
                self.wr = R(ops[0]); self.rd = sum((R(o) for o in ops[1:]), [])
            else:
                self.rd = sum((R(o) for o in ops), [])
                if lds: self.rd.append(("m0", 0))
            self.store_data = []
            if "store" in op and ("x3" in op or "x4" in op):
                self.store_data = R(ops[0]) if op.startswith("buffer_") else R(ops[1])
        elif op.startswith("ds_"):
            self.kind = "ds"
            if op.startswith("ds_read") or op.startswith("ds_bpermute") or op.startswith("ds_permute") or op.startswith("ds_swizzle") or "rtn" in op:
                self.wr = R(ops[0]); self.rd = sum((R(o) for o in ops[1:]), [])
            else:
                self.rd = sum((R(o) for o in ops), [])
        elif op.startswith("s_"):
            self.kind = "salu"
            if op.startswith(("s_cmp", "s_waitcnt", "s_barrier", "s_nop", "s_branch", "s_cbranch", "s_endpgm", "s_setprio", "s_sleep", "s_bitcmp")):
                self.rd = sum((R(o) for o in ops), []) if op.startswith(("s_cmp", "s_bitcmp")) else []
            else:
                self.wr = R(ops[0]) if ops else []
                self.rd = sum((R(o) for o in ops[1:]), [])
                if "saveexec" in op: self.wr.append(("exec", 0))
    def states(self):
        if self.kind == "none": return 0
        if self.op == "s_nop": return int(self.ops[0], 0) + 1
        return 1

def required(prev, cur):
    need = 0
    pw, cw, cr = set(prev.wr), set(cur.wr), set(cur.rd)
    if prev.kind == "valu":
        vw = {r for r in pw if r[0] in "va"}
        sw = {r for r in pw if r[0] in ("s", "vcc")}
        if cur.kind == "mfma" and vw & cr: need = max(need, 2)
        if cur.kind == "valu":
            if sw & cr:
                need = max(need, 4 if cur.op.startswith(("v_readlane", "v_writelane")) else 2)
            if cur.op.startswith(("v_readfirstlane", "v_readlane")) and vw & cr: need = max(need, 1)
            if cur.op.startswith("v_permlane") and vw & cr: need = max(need, 2)
            if getattr(cur, "dpp", False) and vw & cr: need = max(need, 2)
            if prev.op.split("_e")[0] in TRANS and vw & (cr | cw) and cur.op.split("_e")[0] not in TRANS: need = max(need, 1)
            if ("op_sel" in prev.rest or "sdwa" in prev.op) and vw & (cr | cw): need = max(need, 1)
            if ("exec", 0) in pw:
                if getattr(cur, "dpp", False): need = max(need, 5)
                if cur.op.startswith(("v_readlane", "v_readfirstlane", "v_writelane", "v_permlane")): need = max(need, 4)
        if cur.kind == "mfma" and ("exec", 0) in pw: need = max(need, 4)
        if cur.kind == "vmem" and sw & cr: need = max(need, 5)
        if cur.kind == "salu" and sw & cr: need = max(need, 2)
    if prev.kind == "mfma":
        p = prev.mfma_passes
        big = {4: 8, 8: 12}[p]
        if cur.kind == "mfma":
            if pw & (set(cur.a) | set(cur.b)): need = max(need, big)
            if pw & set(cur.c):
                if not (prev.wr == cur.c and cur.mfma_passes == p): need = max(need, {4: 6, 8: 10}[p])
            elif pw & cw:
                need = max(need, big)
        elif cur.kind in ("valu", "vmem", "ds"):
            if pw & (cr | cw): need = max(need, big)
            if cur.kind == "valu" and set(prev.c) & cw: need = max(need, {4: 3, 8: 7}[p])
    if prev.kind == "salu" and ("m0", 0) in pw and cur.kind == "vmem" and getattr(cur, "lds_dma", False):
        need = max(need, 1)
    if prev.kind == "vmem" and prev.store_data and set(prev.store_data) & cw:
        need = max(need, 2 if cur.kind == "valu" else 1)
    return need

class Asm:
    def __init__(self):
        self.ins = []
    def __call__(self, text):
        for line in text.strip("\n").split("\n"):
            line = line.strip()
            if line: self.ins.append(Ins(line))
    def label(self, name): self.ins.append(Ins(name + ":"))
    WINDOW = 14
    def _scan(self, seq, fix):
        out = []
        for cur in seq:
            if cur.kind != "none":
                dist, need_pad = 0, 0
                for prev in reversed(out):
                    if prev.kind == "none": continue
                    r = required(prev, cur)
                    if r > dist: need_pad = max(need_pad, r - dist)
                    dist += prev.states()
                    if dist >= self.WINDOW: break
                if need_pad:
                    if not fix: raise RuntimeError(f"hazard on back edge/branch before: {cur.text} (needs {need_pad})")
                    while need_pad > 0:
                        n = min(need_pad, 16)
                        out.append(Ins(f"s_nop {n-1}")); need_pad -= n
            out.append(cur)
        return out
    def finish(self):
        self.ins = self._scan(self.ins, True)
        labels = {i.text[:-1]: n for n, i in enumerate(self.ins) if i.label}
        for n, i in enumerate(self.ins):
            if i.op.startswith(("s_branch", "s_cbranch")):
                tgt = labels.get(i.ops[0])
                if tgt is None: continue
                pre = self.ins[max(0, n - 40): n + 1]
                post = self.ins[tgt: tgt + 40]
                cut = []
                for x in post:
                    cut.append(x)
                    if x.op in ("s_branch", "s_endpgm"): break
                self._scan(pre + cut, False)
        return "\n".join(("" if i.label else "  ") + i.text for i in self.ins) + "\n"
    def max_vgpr(self):
        m = -1
        for i in self.ins:
            for r in i.wr + i.rd:
                if r[0] == "v": m = max(m, r[1])
        return m + 1
    def max_sgpr(self):
        m = -1
        for i in self.ins:
            for r in i.wr + i.rd:
                if r[0] == "s": m = max(m, r[1])
        return m + 1

def kernel_text(name, asm, vgpr=None):
    body = asm.finish()
    nv = vgpr or asm.max_vgpr()
    nv = max(8, nv)
    acc = (nv + 3) // 4 * 4
    code = f".globl {name}\n.p2align 8\n.type {name},@function\n{name}:\n{body}"
    kd = f""".amdhsa_kernel {name}
  .amdhsa_next_free_vgpr {nv}
  .amdhsa_next_free_sgpr {max(asm.max_sgpr(), 16)}
  .amdhsa_accum_offset {acc}
  .amdhsa_group_segment_fixed_size 0
  .amdhsa_kernarg_size 96
  .amdhsa_user_sgpr_count 2
  .amdhsa_user_sgpr_kernarg_segment_ptr 1
  .amdhsa_system_sgpr_workgroup_id_x 1
.end_amdhsa_kernel
"""
    return code, kd
```

```python
import sys
from asmdsl import *

MB = 1 << 20
WS_Q, WS_KV, WS_O, WS_UT, WS_YT = 0, 4 * MB, 12 * MB, 16 * MB, 20 * MB
KA = dict(q=0, k=8, v=16, shk=24, ssmk=32, ssmD=40, x=48, wqkv=56, wo=64, out=72, dbg=80, ws=88)

def srd(a, d, lo, hi, nbytes, add=0):
    if add:
        a(f"s_add_u32 s{d}, s{lo}, {hex(add)}")
        a(f"s_addc_u32 s{d+1}, s{hi}, 0")
    else:
        a(f"s_mov_b32 s{d}, s{lo}")
        a(f"s_mov_b32 s{d+1}, s{hi}")
    a(f"s_mov_b32 s{d+2}, {hex(nbytes)}")
    a(f"s_mov_b32 s{d+3}, 0x00020000")

def gen_pre():
    a = Asm()
    a("s_cmp_ge_u32 s2, 128")
    a("s_cbranch_scc1 pre_end")
    a(f"s_load_dwordx4 s[4:7], s[0:1], {KA['k']}")
    a(f"s_load_dwordx2 s[20:21], s[0:1], {KA['shk']}")
    a(f"s_load_dwordx2 s[22:23], s[0:1], {KA['ws']}")
    a("v_lshrrev_b32 v1, 6, v0")
    a("v_and_b32 v0, 63, v0")
    a("v_readfirstlane_b32 s3, v1")
    a("s_lshl_b32 s24, s2, 2")
    a("s_add_u32 s24, s24, s3")
    a("s_and_b32 s25, s24, 31")
    a("s_lshr_b32 s26, s24, 5")
    a("s_waitcnt lgkmcnt(0)")
    srd(a, 8, 4, 5, 4 * MB)
    srd(a, 12, 6, 7, 4 * MB)
    srd(a, 16, 20, 21, 8192)
    srd(a, 28, 22, 23, 4 * MB, WS_UT)
    a("v_and_b32 v2, 7, v0")
    a("v_lshrrev_b32 v3, 3, v0")
    a("s_lshl_b32 s27, s25, 6")
    a("s_lshl_b32 s32, s26, 6")
    a("v_lshlrev_b32 v4, 3, v3")
    a("v_add_u32 v4, s27, v4")
    a("v_lshlrev_b32 v5, 3, v2")
    a("v_add_u32 v5, s32, v5")
    a("v_lshlrev_b32 v6, 11, v4")
    a("v_lshl_add_u32 v6, v5, 1, v6")
    KR, VR, WR, WF, OUT, T = 16, 60, 92, 108, 140, 172
    a("v_lshlrev_b32 v7, 3, v5")
    for j in range(4):
        a(f"buffer_load_dwordx4 {v(WR+4*j,4)}, v7, s[16:19], 0 offen offset:{16*j}")
    for r in range(11):
        a(f"v_add_u32 v8, {(r-3)*2048 & 0xffffffff}, v6")
        a(f"buffer_load_dwordx4 {v(KR+4*r,4)}, v8, s[8:11], 0 offen")
    for r in range(8):
        a(f"v_add_u32 v8, {r*2048}, v6")
        a(f"buffer_load_dwordx4 {v(VR+4*r,4)}, v8, s[12:15], 0 offen")
    a("s_mov_b32 s33, 0xffff0000")
    a("s_waitcnt vmcnt(19)")
    for c in range(8):
        for j in range(4):
            src = WR + 2 * c + j // 2
            if j % 2 == 0: a(f"v_lshlrev_b32 v{WF+4*c+j}, 16, v{src}")
            else: a(f"v_and_b32 v{WF+4*c+j}, s33, v{src}")
    a("s_waitcnt vmcnt(0)")
    for c in range(8):
        dw, hi = c // 2, c % 2
        for r in range(11):
            if hi: a(f"v_and_b32 v{T+r}, s33, v{KR+4*r+dw}")
            else: a(f"v_lshlrev_b32 v{T+r}, 16, v{KR+4*r+dw}")
        for r in range(8):
            if hi: a(f"v_and_b32 v{T+11+r}, s33, v{VR+4*r+dw}")
            else: a(f"v_lshlrev_b32 v{T+11+r}, 16, v{VR+4*r+dw}")
        for r in range(8):
            d = T + 19 + r
            a(f"v_mul_f32 v{d}, v{T+r}, v{WF+4*c+3}")
            for j in (2, 1, 0):
                a(f"v_fmac_f32 v{d}, v{T+r+3-j}, v{WF+4*c+j}")
            a(f"v_mul_f32 v{d}, v{d}, v{T+11+r}")
        for p in range(4):
            a(f"v_cvt_pk_bf16_f32 v{OUT+4*c+p}, v{T+19+2*p}, v{T+19+2*p+1}")
    a("v_lshlrev_b32 v9, 12, v5")
    a("v_lshl_add_u32 v9, v4, 1, v9")
    for c in range(8):
        a(f"v_add_u32 v8, {c*4096}, v9")
        a(f"buffer_store_dwordx4 {v(OUT+4*c,4)}, v8, s[28:31], 0 offen")
    a.label("pre_end")
    a("s_endpgm")
    return kernel_text("pre_kernel", a)

def gen_post():
    a = Asm()
    a("s_cmp_ge_u32 s2, 128")
    a("s_cbranch_scc1 post_end")
    a(f"s_load_dwordx2 s[4:5], s[0:1], {KA['q']}")
    a(f"s_load_dwordx2 s[6:7], s[0:1], {KA['out']}")
    a(f"s_load_dwordx2 s[22:23], s[0:1], {KA['ws']}")
    a("v_lshrrev_b32 v1, 6, v0")
    a("v_and_b32 v0, 63, v0")
    a("v_readfirstlane_b32 s3, v1")
    a("s_lshl_b32 s24, s2, 2")
    a("s_add_u32 s24, s24, s3")
    a("s_and_b32 s25, s24, 31")
    a("s_lshr_b32 s26, s24, 5")
    a("s_waitcnt lgkmcnt(0)")
    srd(a, 8, 4, 5, 4 * MB)
    srd(a, 12, 6, 7, 8 * MB)
    srd(a, 28, 22, 23, 4 * MB, WS_YT)
    a("v_and_b32 v2, 7, v0")
    a("v_lshrrev_b32 v3, 3, v0")
    a("s_lshl_b32 s27, s25, 6")
    a("s_lshl_b32 s32, s26, 6")
    a("v_lshlrev_b32 v4, 3, v3")
    a("v_add_u32 v4, s27, v4")
    a("v_lshlrev_b32 v5, 3, v2")
    a("v_add_u32 v5, s32, v5")
    a("v_lshlrev_b32 v6, 11, v4")
    a("v_lshl_add_u32 v6, v5, 1, v6")
    a("v_lshlrev_b32 v7, 12, v4")
    a("v_lshl_add_u32 v7, v5, 1, v7")
    a("v_lshlrev_b32 v9, 12, v5")
    a("v_lshl_add_u32 v9, v4, 1, v9")
    QR, YR, OUT, T = 16, 48, 80, 112
    for r in range(8):
        a(f"v_add_u32 v8, {r*2048}, v6")
        a(f"buffer_load_dwordx4 {v(QR+4*r,4)}, v8, s[8:11], 0 offen")
    for c in range(8):
        a(f"v_add_u32 v8, {c*4096}, v9")
        a(f"buffer_load_dwordx4 {v(YR+4*c,4)}, v8, s[28:31], 0 offen")
    a("s_mov_b32 s33, 0xffff0000")
    a("s_waitcnt vmcnt(0)")
    def unpack(dst, src, hi):
        if hi: a(f"v_and_b32 v{dst}, s33, v{src}")
        else: a(f"v_lshlrev_b32 v{dst}, 16, v{src}")
    for r in range(8):
        for c in range(8):
            unpack(T + c, QR + 4 * r + c // 2, c % 2)
            unpack(T + 8 + c, YR + 4 * c + r // 2, r % 2)
        for c in range(8):
            a(f"v_mul_f32 v{T+c}, v{T+c}, v{T+8+c}")
        for p in range(4):
            a(f"v_cvt_pk_bf16_f32 v{OUT+4*r+p}, v{T+2*p}, v{T+2*p+1}")
    for r in range(8):
        a(f"v_add_u32 v8, {r*4096}, v7")
        a(f"buffer_store_dwordx4 {v(OUT+4*r,4)}, v8, s[12:15], 0 offen")
    a.label("post_end")
    a("s_endpgm")
    return kernel_text("post_kernel", a)

def gen_gemm1(NS=4):
    a = Asm()
    ST = 40960
    a("s_cmp_ge_u32 s2, 256")
    a("s_cbranch_scc1 g1_end")
    a(f"s_load_dwordx4 s[4:7], s[0:1], {KA['x']}")
    a(f"s_load_dwordx2 s[20:21], s[0:1], {KA['ws']}")
    a("v_lshrrev_b32 v1, 6, v0")
    a("v_and_b32 v0, 63, v0")
    a("v_readfirstlane_b32 s3, v1")
    a("s_and_b32 s22, s2, 7")
    a("s_lshr_b32 s23, s2, 3")
    a("s_and_b32 s24, s22, 1")
    a("s_lshl_b32 s24, s24, 3")
    a("s_and_b32 s25, s23, 7")
    a("s_add_u32 s24, s24, s25")
    a("s_lshr_b32 s25, s22, 1")
    a("s_lshl_b32 s25, s25, 2")
    a("s_lshr_b32 s26, s23, 3")
    a("s_add_u32 s25, s25, s26")
    a("s_waitcnt lgkmcnt(0)")
    srd(a, 8, 4, 5, 4 * MB)
    srd(a, 12, 6, 7, 6 * MB)
    srd(a, 16, 20, 21, 12 * MB)
    a("s_cmp_ge_u32 s3, 4")
    a("s_cbranch_scc1 g1_loader")
    a("s_and_b32 s26, s3, 1")
    a("s_lshr_b32 s27, s3, 1")
    XA, WA = 8, 8 + 4 * NS
    F0 = 32; ACC = 72
    a("v_and_b32 v2, 31, v0")
    a("v_lshrrev_b32 v3, 5, v0")
    a("v_bfe_u32 v4, v0, 1, 3")
    a("s_lshl_b32 s28, s26, 13")
    a("v_lshlrev_b32 v5, 7, v2")
    a("v_add_u32 v5, s28, v5")
    for ks in range(4):
        a(f"v_or_b32 v6, {2*ks}, v3")
        a("v_xor_b32 v6, v6, v4")
        a(f"v_lshl_add_u32 v{XA+ks}, v6, 4, v5")
        for st in range(1, NS):
            a(f"v_add_u32 v{XA+4*st+ks}, {st*ST}, v{XA+ks}")
    a("v_bfe_u32 v2, v0, 2, 2")
    a("v_lshl_add_u32 v6, v3, 3, v2")
    a("v_lshlrev_b32 v6, 7, v6")
    a("v_lshrrev_b32 v7, 1, v2")
    a("v_xor_b32 v7, s27, v7")
    a("v_lshl_add_u32 v6, v7, 6, v6")
    a("v_bfe_u32 v7, v0, 4, 1")
    a("v_lshl_add_u32 v6, v7, 5, v6")
    a("v_and_b32 v7, 3, v0")
    a("v_lshl_add_u32 v6, v7, 3, v6")
    for st in range(NS):
        a(f"v_add_u32 v{WA+st}, {16384+st*ST}, v6")
    for i in range(96):
        a(f"v_mov_b32 v{ACC+i}, 0")
    def frag(setn, which):
        return F0 + 20 * setn + 4 * which
    def reads(setn, st, ks):
        r = []
        r.append(f"ds_read_b128 {v(frag(setn,0),4)}, v{XA+4*st+ks}")
        for b in range(3):
            r.append(f"ds_read_b64_tr_b16 {v(frag(setn,2+b),2)}, v{WA+st} offset:{b*8192+ks*2048}")
            r.append(f"ds_read_b64_tr_b16 {v(frag(setn,2+b)+2,2)}, v{WA+st} offset:{b*8192+ks*2048+512}")
        r.append(f"ds_read_b128 {v(frag(setn,1),4)}, v{XA+4*st+ks} offset:4096")
        return r
    def mfma(setn, i, b):
        acc = v(ACC + 16 * (3 * i + b), 16)
        x = v(frag(setn, i), 4); w = v(frag(setn, 2 + b), 4)
        if b < 2: return f"v_mfma_f32_32x32x16_bf16 {acc}, {w}, {x}, {acc}"
        return f"v_mfma_f32_32x32x16_bf16 {acc}, {x}, {w}, {acc}"
    a("s_barrier")
    for r in reads(0, 0, 0): a(r)
    a(f"s_mov_b32 s29, {16//NS}")
    a.label("g1_cloop")
    step = 0
    for st in range(NS):
        for ks in range(4):
            cur = step & 1; nxt = cur ^ 1
            if ks < 3:
                nr = reads(nxt, st, ks + 1)
                a("s_waitcnt lgkmcnt(5)"); a(mfma(cur, 0, 0)); a(nr[0]); a(nr[1])
                a("s_waitcnt lgkmcnt(5)"); a(mfma(cur, 0, 1)); a(nr[2]); a(nr[3])
                a("s_waitcnt lgkmcnt(5)"); a(mfma(cur, 0, 2)); a(nr[4]); a(nr[5])
                a("s_waitcnt lgkmcnt(6)"); a(mfma(cur, 1, 0)); a(nr[6]); a(nr[7])
                a(mfma(cur, 1, 1)); a(mfma(cur, 1, 2))
            else:
                nr = reads(nxt, (st + 1) % NS, 0)
                a("s_waitcnt lgkmcnt(5)"); a(mfma(cur, 0, 0))
                a("s_waitcnt lgkmcnt(3)"); a(mfma(cur, 0, 1))
                a("s_waitcnt lgkmcnt(0)"); a(mfma(cur, 0, 2))
                a("s_barrier")
                a(nr[0]); a(nr[1]); a(nr[2])
                a(mfma(cur, 1, 0)); a(nr[3]); a(nr[4]); a(nr[5])
                a(mfma(cur, 1, 1)); a(nr[6]); a(nr[7])
                a(mfma(cur, 1, 2))
            step += 1
    a("s_sub_u32 s29, s29, 1")
    a("s_cmp_lg_u32 s29, 0")
    a("s_cbranch_scc1 g1_cloop")
    a("s_waitcnt lgkmcnt(0)")
    a("s_lshl_b32 s30, s25, 1")
    a("s_add_u32 s30, s30, s27")
    a("s_lshl_b32 s30, s30, 6")
    a("s_lshl_b32 s31, s24, 2")
    a("s_add_u32 s30, s30, s31")
    a("s_lshl_b32 s31, s26, 1")
    a("s_add_u32 s30, s30, s31")
    a("s_lshl_b32 s31, s30, 11")
    a("s_lshl_b32 s32, s30, 12")
    a(f"s_add_u32 s32, s32, {hex(WS_KV)}")
    a("s_add_u32 s33, s32, 4096")
    a("v_lshlrev_b32 v2, 4, v0")
    n = 0
    for i in range(2):
        for b in range(3):
            for t in range(2):
                acc = ACC + 16 * (3 * i + b) + 8 * t
                d = F0 + 4 * (n % 10); n += 1
                for j in range(4):
                    a(f"v_cvt_pk_bf16_f32 v{d+j}, v{acc+2*j}, v{acc+2*j+1}")
                if b == 0:
                    a(f"buffer_store_dwordx4 {v(d,4)}, v2, s[16:19], s31 offen offset:{i*2048+t*1024}")
                else:
                    a(f"buffer_store_dwordx4 {v(d,4)}, v2, s[16:19], s{32+i} offen offset:{(b-1)*2048+t*1024}")
    a("s_endpgm")
    a.label("g1_loader")
    a("s_sub_u32 s26, s3, 4")
    a("v_lshrrev_b32 v2, 3, v0")
    a("v_and_b32 v3, 7, v0")
    a("v_lshrrev_b32 v4, 4, v0")
    a("v_xor_b32 v5, v3, v4")
    a("v_lshlrev_b32 v6, 11, v2")
    a("v_lshl_add_u32 v8, v5, 4, v6")
    a("v_xor_b32 v5, 4, v5")
    a("v_lshl_add_u32 v9, v5, 4, v6")
    a("v_and_b32 v4, 1, v4")
    a("v_lshlrev_b32 v4, 2, v4")
    a("v_xor_b32 v5, v3, v4")
    a("v_mul_u32_u24 v6, 6144, v2")
    a("v_lshl_add_u32 v10, v5, 4, v6")
    a("s_lshl_b32 s27, s24, 7")
    a("s_lshl_b32 s28, s26, 5")
    a("s_add_u32 s27, s27, s28")
    a("s_lshl_b32 s27, s27, 11")
    a("s_lshl_b32 s28, s26, 12")
    a("s_mul_i32 s29, s26, 6")
    a("s_lshl_b32 s30, s29, 10")
    a("s_add_u32 s30, s30, 16384")
    for j in range(6):
        a(f"s_add_u32 s31, s29, {j}")
        a("s_lshr_b32 s32, s31, 3")
        a("s_and_b32 s31, s31, 7")
        a(f"s_mul_i32 s31, s31, {8*6144}")
        a("s_lshl_b32 s32, s32, 11")
        a("s_add_u32 s31, s31, s32")
        a("s_lshl_b32 s32, s25, 7")
        a(f"s_add_u32 s{40+j}, s31, s32")
    def issue(kt):
        slot = kt % NS
        for j in range(4):
            a(f"s_add_u32 m0, s28, {slot*ST + j*1024}")
            a(f"s_add_u32 s33, s27, {j*16384 + kt*128}")
            a(f"buffer_load_dwordx4 v{8+(j&1)}, s[8:11], s33 offen lds")
        for j in range(6):
            a(f"s_add_u32 m0, s30, {slot*ST + j*1024}")
            a(f"s_add_u32 s33, s{40+j}, {kt*64*6144}")
            a(f"buffer_load_dwordx4 v10, s[12:15], s33 offen lds")
    for kt in range(NS - 1): issue(kt)
    for kt in range(17):
        if kt < 16:
            a(f"s_waitcnt vmcnt({10*(min(kt+NS-2,15)-kt)})")
        a("s_barrier")
        if kt + NS - 1 <= 15: issue(kt + NS - 1)
    a.label("g1_end")
    a("s_endpgm")
    return kernel_text("gemm1_kernel", a)

def gen_gemm2(NS=3):
    a = Asm()
    ST = 49152
    NT = 8
    a("s_cmp_ge_u32 s2, 256")
    a("s_cbranch_scc1 g2_end")
    a(f"s_load_dwordx4 s[4:7], s[0:1], {KA['wo']}")
    a(f"s_load_dwordx2 s[20:21], s[0:1], {KA['ws']}")
    a("v_lshrrev_b32 v1, 6, v0")
    a("v_and_b32 v0, 63, v0")
    a("v_readfirstlane_b32 s3, v1")
    a("s_and_b32 s22, s2, 7")
    a("s_lshr_b32 s23, s2, 3")
    a("s_and_b32 s24, s22, 3")
    a("s_lshl_b32 s24, s24, 2")
    a("s_and_b32 s25, s23, 3")
    a("s_add_u32 s24, s24, s25")
    a("s_lshr_b32 s25, s22, 2")
    a("s_lshl_b32 s25, s25, 3")
    a("s_lshr_b32 s26, s23, 2")
    a("s_add_u32 s25, s25, s26")
    a("s_waitcnt lgkmcnt(0)")
    srd(a, 8, 20, 21, 4 * MB, WS_O)
    srd(a, 12, 4, 5, 2 * MB)
    srd(a, 16, 6, 7, 8 * MB)
    a("s_cmp_ge_u32 s3, 4")
    a("s_cbranch_scc1 g2_loader")
    a("s_and_b32 s26, s3, 1")
    a("s_lshr_b32 s27, s3, 1")
    OA, WA = 8, 12
    F0 = 16; ACC = 64
    a("s_lshl_b32 s28, s26, 14")
    a("v_lshlrev_b32 v5, 4, v0")
    a("v_add_u32 v5, s28, v5")
    for st in range(NS):
        a(f"v_add_u32 v{OA+st}, {st*ST}, v5")
    a("v_lshrrev_b32 v3, 5, v0")
    a("v_bfe_u32 v2, v0, 2, 2")
    a("v_lshl_add_u32 v6, v3, 2, v2")
    a("v_lshlrev_b32 v6, 7, v6")
    a("v_lshrrev_b32 v7, 1, v2")
    a("v_xor_b32 v7, s27, v7")
    a("v_lshl_add_u32 v6, v7, 6, v6")
    a("v_bfe_u32 v7, v0, 4, 1")
    a("v_lshl_add_u32 v6, v7, 5, v6")
    a("v_and_b32 v7, 3, v0")
    a("v_lshl_add_u32 v6, v7, 3, v6")
    for st in range(NS):
        a(f"v_add_u32 v{WA+st}, {32768+st*ST}, v6")
    for i in range(32):
        a(f"v_mov_b32 v{ACC+i}, 0")
    NSET = 4
    def frag(setn, which):
        return F0 + 12 * setn + 4 * which
    def reads(setn, st, kk):
        return [f"ds_read_b64_tr_b16 {v(frag(setn,0),2)}, v{WA+st} offset:{kk*2048}",
                f"ds_read_b64_tr_b16 {v(frag(setn,0)+2,2)}, v{WA+st} offset:{kk*2048+1024}",
                f"ds_read_b128 {v(frag(setn,1),4)}, v{OA+st} offset:{kk*1024}",
                f"ds_read_b128 {v(frag(setn,2),4)}, v{OA+st} offset:{8192+kk*1024}"]
    def mfma(setn, i):
        acc = v(ACC + 16 * i, 16)
        return f"v_mfma_f32_32x32x16_bf16 {acc}, {v(frag(setn,0),4)}, {v(frag(setn,1+i),4)}, {acc}"
    a("s_barrier")
    steps = [(kt, kk) for kt in range(NT) for kk in range(8)]
    for r in reads(0, 0, 0): a(r)
    for r in reads(1, 0, 1): a(r)
    for n, (kt, kk) in enumerate(steps):
        cur = n % NSET
        nn = n + 2
        have_next = nn < len(steps)
        if have_next:
            kt2, kk2 = steps[nn]
            nr = reads(nn % NSET, kt2 % NS, kk2)
        if have_next and kk2 == 0:
            a("s_waitcnt lgkmcnt(0)")
            a(mfma(cur, 0))
            a("s_barrier")
            a(nr[0]); a(nr[1])
            a(mfma(cur, 1))
            a(nr[2]); a(nr[3])
        elif have_next:
            a("s_waitcnt lgkmcnt(5)")
            a(mfma(cur, 0)); a(nr[0]); a(nr[1])
            a("s_waitcnt lgkmcnt(6)")
            a(mfma(cur, 1)); a(nr[2]); a(nr[3])
        else:
            a("s_waitcnt lgkmcnt(0)")
            a(mfma(cur, 0)); a(mfma(cur, 1))
    a("v_and_b32 v2, 31, v0")
    a("s_lshl_b32 s30, s24, 7")
    a("s_lshl_b32 s31, s26, 6")
    a("s_add_u32 s30, s30, s31")
    a("v_add_u32 v2, s30, v2")
    a("v_lshlrev_b32 v2, 12, v2")
    a("v_lshl_add_u32 v2, v3, 4, v2")
    a("s_lshl_b32 s30, s25, 7")
    a("s_lshl_b32 s31, s27, 6")
    a("s_add_u32 s30, s30, s31")
    a("s_add_u32 s30, s30, 2048")
    a(f"s_add_u32 s31, s30, {32*4096}")
    for i in range(2):
        for pr in range(2):
            d = F0 + 4 * (2 * i + pr)
            acc = ACC + 16 * i + 8 * pr
            for j in range(4):
                a(f"v_cvt_pk_bf16_f32 v{d+j}, v{acc+2*j}, v{acc+2*j+1}")
            a(f"v_permlane32_swap_b32 v{d}, v{d+2}")
            a(f"v_permlane32_swap_b32 v{d+1}, v{d+3}")
            a(f"buffer_store_dwordx4 {v(d,4)}, v2, s[16:19], s{30+i} offen offset:{32*pr}")
    a("s_endpgm")
    a.label("g2_loader")
    a("s_sub_u32 s26, s3, 4")
    a("v_lshlrev_b32 v8, 4, v0")
    a("v_lshrrev_b32 v2, 3, v0")
    a("v_and_b32 v3, 7, v0")
    a("v_bfe_u32 v4, v0, 4, 1")
    a("v_lshlrev_b32 v4, 2, v4")
    a("v_xor_b32 v5, v3, v4")
    a("v_lshlrev_b32 v6, 11, v2")
    a("v_lshl_add_u32 v10, v5, 4, v6")
    a("s_lshl_b32 s27, s24, 2")
    a("s_add_u32 s27, s27, s26")
    a("s_lshl_b32 s27, s27, 16")
    a("s_lshl_b32 s28, s26, 13")
    a("s_lshl_b32 s30, s26, 12")
    a("s_add_u32 s30, s30, 32768")
    a("s_lshl_b32 s31, s26, 16")
    a("s_lshl_b32 s32, s25, 7")
    a("s_add_u32 s31, s31, s32")
    def issue(kt):
        slot = kt % NS
        for h in range(2):
            a(f"s_add_u32 m0, s28, {slot*ST + h*4096}")
            a(f"s_add_u32 s33, s27, {kt*8192 + h*4096}")
            for j in range(4):
                a(f"buffer_load_dwordx4 v8, s[8:11], s33 offen offset:{j*1024} lds")
        for j in range(4):
            a(f"s_add_u32 m0, s30, {slot*ST + j*1024}")
            a(f"s_add_u32 s33, s31, {kt*128*2048 + j*8*2048}")
            a(f"buffer_load_dwordx4 v10, s[12:15], s33 offen lds")
    for kt in range(NS - 1): issue(kt)
    for kt in range(NT):
        a(f"s_waitcnt vmcnt({12*(min(kt+NS-2,NT-1)-kt)})")
        a("s_barrier")
        if kt + NS - 1 <= NT - 1: issue(kt + NS - 1)
    a.label("g2_end")
    a("s_endpgm")
    return kernel_text("gemm2_kernel", a)

def gen_attn():
    a = Asm()
    a("s_cmp_ge_u32 s2, 512")
    a("s_cbranch_scc1 at_end")
    a(f"s_load_dwordx2 s[20:21], s[0:1], {KA['ws']}")
    a("v_lshrrev_b32 v1, 6, v0")
    a("v_and_b32 v0, 63, v0")
    a("v_readfirstlane_b32 s3, v1")
    a("s_and_b32 s22, s2, 7")
    a("s_lshr_b32 s23, s2, 3")
    a("s_lshl_b32 s24, s22, 2")
    a("s_lshr_b32 s25, s23, 4")
    a("s_add_u32 s24, s24, s25")
    a("s_and_b32 s25, s23, 15")
    a("s_lshl_b32 s25, s25, 2")
    a("s_add_u32 s25, s25, s3")
    a("s_waitcnt lgkmcnt(0)")
    srd(a, 8, 20, 21, 4 * MB, WS_Q)
    srd(a, 12, 20, 21, 8 * MB, WS_KV)
    srd(a, 16, 20, 21, 4 * MB, WS_O)
    Q, KV, S, O, T = 8, 16, 88, 232, 248
    a("s_lshl_b32 s26, s24, 6")
    a("s_add_u32 s26, s26, s25")
    a("v_lshlrev_b32 v2, 4, v0")
    a("s_lshl_b32 s27, s26, 11")
    a(f"buffer_load_dwordx4 {v(Q,4)}, v2, s[8:11], s27 offen")
    a(f"buffer_load_dwordx4 {v(Q+4,4)}, v2, s[8:11], s27 offen offset:1024")
    a("s_lshl_b32 s27, s26, 12")
    a(f"s_sub_u32 s27, s27, {8*4096}")
    a("v_add_u32 v3, s27, v2")
    for j in range(9):
        a(f"v_add_u32 v4, {j*4096}, v3")
        a(f"buffer_load_dwordx4 {v(KV+8*j,4)}, v4, s[12:15], 0 offen")
        a(f"buffer_load_dwordx4 {v(KV+8*j+4,4)}, v4, s[12:15], 0 offen offset:1024")
    a("v_and_b32 v5, 31, v0")
    a("v_lshrrev_b32 v6, 5, v0")
    a("v_lshlrev_b32 v6, 2, v6")
    a("v_sub_u32 v5, v5, v6")
    M0 = 40
    for i in range(16):
        a(f"v_cmp_le_i32 s[{M0+2*i}:{M0+2*i+1}], {8*(i//4)+i%4}, v5")
    for j in range(9):
        a(f"s_waitcnt vmcnt({2*(8-j)})")
        acc = v(S + 16 * j, 16)
        a(f"v_mfma_f32_32x32x16_bf16 {acc}, {v(KV+8*j,4)}, {v(Q,4)}, 0")
        a(f"v_mfma_f32_32x32x16_bf16 {acc}, {v(KV+8*j+4,4)}, {v(Q+4,4)}, {acc}")
    for j in range(9):
        a(f"v_add_u32 v4, {j*4096}, v3")
        a(f"buffer_load_dwordx4 {v(KV+8*j,4)}, v4, s[12:15], 0 offen offset:2048")
        a(f"buffer_load_dwordx4 {v(KV+8*j+4,4)}, v4, s[12:15], 0 offen offset:3072")
    a("s_nop 7")
    for j in range(8):
        a(f"s_cmp_ge_u32 s25, {8-j}")
        a("s_cbranch_scc1 at_valid")
        for i in range(16):
            a(f"v_mov_b32 v{S+16*j+i}, 0xf149f2ca")
    a.label("at_valid")
    for i in range(16):
        a(f"v_cndmask_b32 v{S+i}, v{S+i}, v{S+128+i}, s[{M0+2*i}:{M0+2*i+1}]")
    MK = S + 128
    a("v_mov_b32 v6, 0xffff")
    a("v_mov_b32 v7, 0xffff0000")
    for j in range(8):
        a(f"v_cndmask_b32 v{MK+j}, 0, v6, s[{M0+4*j}:{M0+4*j+1}]")
        a(f"v_cndmask_b32 v{MK+8+j}, 0, v7, s[{M0+4*j+2}:{M0+4*j+3}]")
    for j in range(8):
        a(f"v_or_b32 v{MK+j}, v{MK+j}, v{MK+8+j}")
    a(f"v_max3_f32 v{T}, v{S}, v{S+1}, v{S+2}")
    a(f"v_max3_f32 v{T+1}, v{S+3}, v{S+4}, v{S+5}")
    idx = 6; k = 0
    while idx < 128:
        a(f"v_max3_f32 v{T+k}, v{T+k}, v{S+idx}, v{S+idx+1}")
        idx += 2; k ^= 1
    a(f"v_max_f32 v{T}, v{T}, v{T+1}")
    a(f"v_mov_b32 v{T+1}, v{T}")
    a(f"v_permlane32_swap_b32 v{T}, v{T+1}")
    a(f"v_max_f32 v{T}, v{T}, v{T+1}")
    C = 0.17677669529663687 * 1.4426950408889634
    import struct
    cbits = struct.unpack("<I", struct.pack("<f", C))[0]
    a(f"s_mov_b32 s28, {hex(cbits)}")
    a(f"v_mul_f32 v{T}, s28, v{T}")
    a(f"v_mov_b32 v{T+2}, 0")
    a(f"v_mov_b32 v{T+3}, 0")
    for j in range(8):
        b = S + 16 * j
        for i in range(16):
            a(f"v_fma_f32 v{b+i}, v{b+i}, s28, -v{T}")
        for i in range(16):
            a(f"v_exp_f32 v{b+i}, v{b+i}")
        for i in range(16):
            a(f"v_add_f32 v{T+2+(i&1)}, v{T+2+(i&1)}, v{b+i}")
        for i in range(8):
            a(f"v_cvt_pk_bf16_f32 v{b+i}, v{b+2*i}, v{b+2*i+1}")
    for i in range(8):
        a(f"v_and_b32 v{S+8+i}, v{MK+i}, v{S+i}")
        a(f"v_bfi_b32 v{S+i}, v{MK+i}, 0, v{S+i}")
    oacc = v(O, 16)
    first = True
    for j in range(9):
        a(f"s_waitcnt vmcnt({2*(8-j)})")
        pb = S + 16 * j if j < 8 else S + 8
        for t in range(2):
            a(f"v_mfma_f32_32x32x16_bf16 {oacc}, {v(KV+8*j+4*t,4)}, {v(pb+4*t,4)}, {'0' if first else oacc}")
            first = False
    a(f"v_add_f32 v{T+2}, v{T+2}, v{T+3}")
    a(f"v_mov_b32 v{T+3}, v{T+2}")
    a(f"v_permlane32_swap_b32 v{T+2}, v{T+3}")
    a(f"v_add_f32 v{T+2}, v{T+2}, v{T+3}")
    a(f"v_rcp_f32 v{T+2}, v{T+2}")
    for i in range(16):
        a(f"v_mul_f32 v{O+i}, v{O+i}, v{T+2}")
    for i in range(8):
        a(f"v_cvt_pk_bf16_f32 v{Q+i}, v{O+2*i}, v{O+2*i+1}")
    a("s_lshl_b32 s27, s25, 5")
    a("s_add_u32 s27, s27, s24")
    a("s_lshl_b32 s27, s27, 11")
    a(f"buffer_store_dwordx4 {v(Q,4)}, v2, s[16:19], s27 offen")
    a(f"buffer_store_dwordx4 {v(Q+4,4)}, v2, s[16:19], s27 offen offset:1024")
    a.label("at_end")
    a("s_endpgm")
    return kernel_text("attn_kernel", a)

CONV_LDS = 12800
def gen_conv():
    a = Asm()
    UB, HB, YB = 256, 4416, 4352
    a("s_cmp_ge_u32 s2, 256")
    a("s_cbranch_scc1 cv_end")
    a(f"s_load_dwordx4 s[4:7], s[0:1], {KA['ssmk']}")
    a(f"s_load_dwordx2 s[20:21], s[0:1], {KA['ws']}")
    a("v_lshrrev_b32 v1, 6, v0")
    a("v_and_b32 v0, 63, v0")
    a("v_readfirstlane_b32 s3, v1")
    a("s_lshl_b32 s24, s2, 2")
    a("s_add_u32 s24, s24, s3")
    a(f"s_mul_i32 s25, s3, {CONV_LDS}")
    a("s_waitcnt lgkmcnt(0)")
    srd(a, 8, 4, 5, 4 * MB)
    srd(a, 12, 20, 21, 4 * MB, WS_UT)
    srd(a, 16, 20, 21, 4 * MB, WS_YT)
    srd(a, 28, 6, 7, 2048)
    a("v_lshlrev_b32 v2, 4, v0")
    a("s_lshl_b32 s26, s24, 12")
    a(f"s_add_u32 m0, s25, {HB}")
    for j in range(4):
        a(f"buffer_load_dwordx4 v2, s[8:11], s26 offen offset:{j*1024} lds")
    a(f"s_add_u32 m0, s25, {UB}")
    for j in range(4):
        a(f"buffer_load_dwordx4 v2, s[12:15], s26 offen offset:{j*1024} lds")
    a("s_lshl_b32 s27, s24, 1")
    a("v_mov_b32 v3, s27")
    a("buffer_load_ushort v9, v3, s[28:31], 0 offen")
    a("v_mov_b32 v4, 0")
    a("v_lshlrev_b32 v3, 2, v0")
    a("v_add_u32 v3, s25, v3")
    a("ds_write_b32 v3, v4")
    a("v_and_b32 v5, 15, v0")
    a("v_lshlrev_b32 v5, 2, v5")
    a("v_add_u32 v5, s25, v5")
    a(f"ds_write_b32 v5, v4 offset:{YB}")
    a("v_lshrrev_b32 v4, 4, v0")
    a("v_bfe_u32 v5, v0, 2, 2")
    a("v_and_b32 v6, 3, v0")
    a("v_lshlrev_b32 v7, 2, v6")
    a("v_sub_u32 v7, v7, v5")
    a("v_lshlrev_b32 v8, 3, v4")
    a("v_sub_u32 v7, v7, v8")
    a("v_lshlrev_b32 v7, 3, v7")
    a(f"v_add_u32 v7, {UB+24-32}, v7")
    a("v_add_u32 v10, s25, v7")
    a("v_add3_u32 v7, v8, v5, v6")
    a("v_lshlrev_b32 v7, 3, v7")
    a(f"v_add_u32 v7, {HB-24}, v7")
    a("v_add_u32 v11, s25, v7")
    B0, A0, ACC = 16, 80, 96
    a("s_waitcnt vmcnt(0) lgkmcnt(0)")
    for sN in range(16):
        a(f"ds_read_b64_tr_b16 {v(B0+4*sN,2)}, v11 offset:{256*sN}")
        a(f"ds_read_b64_tr_b16 {v(B0+4*sN+2,2)}, v11 offset:{256*sN+32}")
        if sN % 4 == 3: a("s_waitcnt lgkmcnt(4)")
    def aread(d):
        r = A0 + 4 * (d % 4)
        a(f"ds_read_b64_tr_b16 {v(r,2)}, v10 offset:{128*d+32}")
        a(f"ds_read_b64_tr_b16 {v(r+2,2)}, v10 offset:{128*d}")
    aread(0); aread(1); aread(2)
    started = set()
    for d in range(32):
        if d + 3 < 32:
            a("s_waitcnt lgkmcnt(4)")
        else:
            a(f"s_waitcnt lgkmcnt({2*(31-d)})")
        first = True
        for sN in range((31 - d) // 2 + 1):
            T = d + 2 * sN
            acc = v(ACC + 4 * T, 4)
            c = acc if T in started else "0"
            started.add(T)
            a(f"v_mfma_f32_16x16x32_bf16 {acc}, {v(A0+4*(d%4),4)}, {v(B0+4*sN,4)}, {c}")
            if first and d + 3 < 32:
                aread(d + 3)
            first = False
    a("v_lshlrev_b32 v3, 2, v0")
    a("v_add_u32 v3, s25, v3")
    a("v_mov_b32 v4, 0")
    a(f"ds_write_b32 v3, v4 offset:{YB+8192}")
    for T in range(32):
        a(f"ds_write_b32 v3, v{ACC+4*T} offset:{YB+256*T}")
    for T in range(32):
        for x in range(1, 4):
            a(f"ds_add_f32 v3, v{ACC+4*T+x} offset:{YB+256*T+4*x}")
    a("v_lshlrev_b32 v9, 16, v9")
    a("v_lshlrev_b32 v3, 5, v0")
    a("v_add_u32 v3, s25, v3")
    a("v_add_u32 v5, s25, v2")
    a("s_mov_b32 s33, 0xffff0000")
    a("s_waitcnt lgkmcnt(0)")
    for j in range(4):
        y = 16 + 12 * j
        a(f"ds_read_b128 {v(y,4)}, v3 offset:{YB+2048*j}")
        a(f"ds_read_b128 {v(y+4,4)}, v3 offset:{YB+2048*j+16}")
        a(f"ds_read_b128 {v(y+8,4)}, v5 offset:{UB+1024*j}")
    for j in range(4):
        y = 16 + 12 * j
        a(f"s_waitcnt lgkmcnt({3*(3-j)})")
        for e in range(8):
            if e % 2: a(f"v_and_b32 v{64+e}, s33, v{y+8+e//2}")
            else: a(f"v_lshlrev_b32 v{64+e}, 16, v{y+8+e//2}")
        for e in range(8):
            a(f"v_fmac_f32 v{y+e}, v{64+e}, v9")
        for p in range(4):
            a(f"v_cvt_pk_bf16_f32 v{72+4*j+p}, v{y+2*p}, v{y+2*p+1}")
        a(f"buffer_store_dwordx4 {v(72+4*j,4)}, v2, s[16:19], s26 offen offset:{1024*j}")
    a.label("cv_end")
    a("s_endpgm")
    return kernel_text("conv_kernel", a)

HEADER = open("concat_heads__ssm_conv_h3__sliding_block__prompt.s.ref").read().split("; Override")[0]

def emit(launches, kernels, path):
    out = HEADER
    for (k, g, b, l) in launches:
        out += f"; @launch kernel={k} grid=({g},1,1) block=({b},1,1) lds={l}\n"
    out += '.amdgcn_target "amdgcn-amd-amdhsa--gfx950"\n.text\n'
    for c, _ in kernels: out += c
    out += '.section .rodata,"a"\n'
    for _, kd in kernels: out += ".p2align 6\n" + kd
    open(path, "w").write(out)

if __name__ == "__main__":
    ks = [gen_pre(), gen_gemm1(), gen_conv(), gen_attn(), gen_gemm2(), gen_post()]
    launches = [("pre_kernel", 128, 256, 0), ("gemm1_kernel", 256, 512, 163840), ("conv_kernel", 256, 256, 4 * CONV_LDS),
                ("attn_kernel", 512, 256, 0), ("gemm2_kernel", 256, 512, 3 * 49152), ("post_kernel", 128, 256, 0)]
    emit(launches, ks, sys.argv[1] if len(sys.argv) > 1 else "concat_heads__ssm_conv_h3__sliding_block__prompt.s")
```

```python
import re

def v(i, n=1):
    return f"v{i}" if n == 1 else f"v[{i}:{i+n-1}]"
def s(i, n=1):
    return f"s{i}" if n == 1 else f"s[{i}:{i+n-1}]"

_REG = re.compile(r"\b([vsa])(\d+)\b|\b([vsa])\[(\d+):(\d+)\]|\b(vcc|exec|m0|scc)\b")

def regs_of(text):
    out = []
    for m in _REG.finditer(text):
        if m.group(1):
            out.append((m.group(1), int(m.group(2))))
        elif m.group(3):
            out += [(m.group(3), i) for i in range(int(m.group(4)), int(m.group(5)) + 1)]
        else:
            out.append((m.group(6), 0))
    return out

TRANS = ("v_exp_f32", "v_log_f32", "v_rcp_f32", "v_rsq_f32", "v_sqrt_f32", "v_sin_f32", "v_cos_f32")

class Ins:
    def __init__(self, text):
        self.text = text
        t = text.split(";")[0].strip()
        self.label = t.endswith(":")
        self.op = t.split()[0] if t and not self.label else ""
        self.rest = t[len(self.op):].strip()
        self.ops = [o.strip() for o in self._split(self.rest)]
        self.classify()
    @staticmethod
    def _split(r):
        out, depth, cur = [], 0, ""
        for ch in r:
            if ch in "[(": depth += 1
            if ch in "])": depth -= 1
            if ch == "," and depth == 0:
                out.append(cur); cur = ""
            else:
                cur += ch
        if cur.strip(): out.append(cur)
        return out
    def classify(self):
        op, ops = self.op, self.ops
        self.wr, self.rd = [], []
        self.kind = "other"
        self.mfma_passes = 0
        if self.label or not op or op.startswith("."):
            self.kind = "none"; return
        R = regs_of
        if op.startswith("v_mfma"):
            self.kind = "mfma"
            self.mfma_passes = 8 if "32x32" in op else 4
            self.wr = R(ops[0]); self.a = R(ops[1]); self.b = R(ops[2]); self.c = R(ops[3].split()[0])
            self.rd = self.a + self.b + self.c
        elif op.startswith("v_"):
            self.kind = "valu"
            if op.startswith("v_cmp"):
                self.wr = R(ops[0]); self.rd = sum((R(o) for o in ops[1:]), [])
                if op.startswith("v_cmpx"): self.wr += [("exec", 0)]
            elif op.startswith("v_permlane") and "swap" in op:
                self.wr = R(ops[0]) + R(ops[1]); self.rd = list(self.wr)
            elif op in ("v_add_co_u32", "v_sub_co_u32", "v_addc_co_u32", "v_subb_co_u32", "v_add_co_u32_e32", "v_addc_co_u32_e32"):
                self.wr = R(ops[0]) + R(ops[1]); self.rd = sum((R(o) for o in ops[2:]), [])
            elif op == "v_nop":
                pass
            else:
                self.wr = R(ops[0]); self.rd = sum((R(o) for o in ops[1:]), [])
                if op.startswith("v_fmac") or op.startswith("v_pk_fmac") or "dpp" in self.rest or op.endswith("_dpp") or op.startswith("v_writelane"):
                    self.rd += self.wr
                if op.startswith("v_cndmask") and len(ops) == 3: self.rd.append(("vcc", 0))
            self.dpp = ("quad_perm" in self.rest or "row_" in self.rest or "wave_" in self.rest)
        elif op.startswith("buffer_") or op.startswith("global_"):
            self.kind = "vmem"
            lds = re.search(r"\blds\b", self.rest) is not None
            self.lds_dma = lds
            if "load" in op and not lds:
                self.wr = R(ops[0]); self.rd = sum((R(o) for o in ops[1:]), [])
            else:
                self.rd = sum((R(o) for o in ops), [])
                if lds: self.rd.append(("m0", 0))
            self.store_data = []
            if "store" in op and ("x3" in op or "x4" in op):
                self.store_data = R(ops[0]) if op.startswith("buffer_") else R(ops[1])
        elif op.startswith("ds_"):
            self.kind = "ds"
            if op.startswith("ds_read") or op.startswith("ds_bpermute") or op.startswith("ds_permute") or op.startswith("ds_swizzle") or "rtn" in op:
                self.wr = R(ops[0]); self.rd = sum((R(o) for o in ops[1:]), [])
            else:
                self.rd = sum((R(o) for o in ops), [])
        elif op.startswith("s_"):
            self.kind = "salu"
            if op.startswith(("s_cmp", "s_waitcnt", "s_barrier", "s_nop", "s_branch", "s_cbranch", "s_endpgm", "s_setprio", "s_sleep", "s_bitcmp")):
                self.rd = sum((R(o) for o in ops), []) if op.startswith(("s_cmp", "s_bitcmp")) else []
            else:
                self.wr = R(ops[0]) if ops else []
                self.rd = sum((R(o) for o in ops[1:]), [])
                if "saveexec" in op: self.wr.append(("exec", 0))
    def states(self):
        if self.kind == "none": return 0
        if self.op == "s_nop": return int(self.ops[0], 0) + 1
        return 1

def required(prev, cur):
    need = 0
    pw, cw, cr = set(prev.wr), set(cur.wr), set(cur.rd)
    if prev.kind == "valu":
        vw = {r for r in pw if r[0] in "va"}
        sw = {r for r in pw if r[0] in ("s", "vcc")}
        if cur.kind == "mfma" and vw & cr: need = max(need, 2)
        if cur.kind == "valu":
            if sw & cr:
                need = max(need, 4 if cur.op.startswith(("v_readlane", "v_writelane")) else 2)
            if cur.op.startswith(("v_readfirstlane", "v_readlane")) and vw & cr: need = max(need, 1)
            if cur.op.startswith("v_permlane") and vw & cr: need = max(need, 2)
            if getattr(cur, "dpp", False) and vw & cr: need = max(need, 2)
            if prev.op.split("_e")[0] in TRANS and vw & (cr | cw) and cur.op.split("_e")[0] not in TRANS: need = max(need, 1)
            if ("op_sel" in prev.rest or "sdwa" in prev.op) and vw & (cr | cw): need = max(need, 1)
            if ("exec", 0) in pw:
                if getattr(cur, "dpp", False): need = max(need, 5)
                if cur.op.startswith(("v_readlane", "v_readfirstlane", "v_writelane", "v_permlane")): need = max(need, 4)
        if cur.kind == "mfma" and ("exec", 0) in pw: need = max(need, 4)
        if cur.kind == "vmem" and sw & cr: need = max(need, 5)
        if cur.kind == "salu" and sw & cr: need = max(need, 2)
    if prev.kind == "mfma":
        p = prev.mfma_passes
        big = {4: 8, 8: 12}[p]
        if cur.kind == "mfma":
            if pw & (set(cur.a) | set(cur.b)): need = max(need, big)
            if pw & set(cur.c):
                if not (prev.wr == cur.c and cur.mfma_passes == p): need = max(need, {4: 6, 8: 10}[p])
            elif pw & cw:
                need = max(need, big)
        elif cur.kind in ("valu", "vmem", "ds"):
            if pw & (cr | cw): need = max(need, big)
            if cur.kind == "valu" and set(prev.c) & cw: need = max(need, {4: 3, 8: 7}[p])
    if prev.kind == "salu" and ("m0", 0) in pw and cur.kind == "vmem" and getattr(cur, "lds_dma", False):
        need = max(need, 1)
    if prev.kind == "vmem" and prev.store_data and set(prev.store_data) & cw:
        need = max(need, 2 if cur.kind == "valu" else 1)
    return need

class Asm:
    def __init__(self):
        self.ins = []
    def __call__(self, text):
        for line in text.strip("\n").split("\n"):
            line = line.strip()
            if line: self.ins.append(Ins(line))
    def label(self, name): self.ins.append(Ins(name + ":"))
    WINDOW = 14
    def _scan(self, seq, fix):
        out = []
        for cur in seq:
            if cur.kind != "none":
                dist, need_pad = 0, 0
                for prev in reversed(out):
                    if prev.kind == "none": continue
                    r = required(prev, cur)
                    if r > dist: need_pad = max(need_pad, r - dist)
                    dist += prev.states()
                    if dist >= self.WINDOW: break
                if need_pad:
                    if not fix: raise RuntimeError(f"hazard on back edge/branch before: {cur.text} (needs {need_pad})")
                    while need_pad > 0:
                        n = min(need_pad, 16)
                        out.append(Ins(f"s_nop {n-1}")); need_pad -= n
            out.append(cur)
        return out
    def finish(self):
        self.ins = self._scan(self.ins, True)
        labels = {i.text[:-1]: n for n, i in enumerate(self.ins) if i.label}
        for n, i in enumerate(self.ins):
            if i.op.startswith(("s_branch", "s_cbranch")):
                tgt = labels.get(i.ops[0])
                if tgt is None: continue
                pre = self.ins[max(0, n - 40): n + 1]
                post = self.ins[tgt: tgt + 40]
                cut = []
                for x in post:
                    cut.append(x)
                    if x.op in ("s_branch", "s_endpgm"): break
                self._scan(pre + cut, False)
        return "\n".join(("" if i.label else "  ") + i.text for i in self.ins) + "\n"
    def max_vgpr(self):
        m = -1
        for i in self.ins:
            for r in i.wr + i.rd:
                if r[0] == "v": m = max(m, r[1])
        return m + 1
    def max_sgpr(self):
        m = -1
        for i in self.ins:
            for r in i.wr + i.rd:
                if r[0] == "s": m = max(m, r[1])
        return m + 1

def kernel_text(name, asm, vgpr=None):
    body = asm.finish()
    nv = vgpr or asm.max_vgpr()
    nv = max(8, nv)
    acc = (nv + 3) // 4 * 4
    code = f".globl {name}\n.p2align 8\n.type {name},@function\n{name}:\n{body}"
    kd = f""".amdhsa_kernel {name}
  .amdhsa_next_free_vgpr {nv}
  .amdhsa_next_free_sgpr {max(asm.max_sgpr(), 16)}
  .amdhsa_accum_offset {acc}
  .amdhsa_group_segment_fixed_size 0
  .amdhsa_kernarg_size 96
  .amdhsa_user_sgpr_count 2
  .amdhsa_user_sgpr_kernarg_segment_ptr 1
  .amdhsa_system_sgpr_workgroup_id_x 1
.end_amdhsa_kernel
"""
    return code, kd

class Tracker:
    def __init__(self, a, name, maxn):
        self.a, self.name, self.maxn = a, name, maxn
        self.q = []
    def issue(self, text, tag):
        self.a(text); self.q.append(tag)
    def need(self, *tags):
        last = -1
        for i, t in enumerate(self.q):
            if t in tags: last = i
        if last < 0: return
        n = len(self.q) - 1 - last
        if n <= self.maxn:
            self.a(f"s_waitcnt {self.name}({n})")
            self.q = self.q[last + 1:]
        else:
            self.a(f"s_waitcnt {self.name}({self.maxn})")
            self.q = self.q[len(self.q) - self.maxn:]
    def drain(self):
        self.a(f"s_waitcnt {self.name}(0)"); self.q = []
```

```python
import sys, struct
from asmdsl import *

MB = 1 << 20
WS_Q, WS_KV, WS_O, WS_UT, WS_YT = 0, 4 * MB, 12 * MB, 16 * MB, 20 * MB
P = dict(q=76, k=78, v=80, shk=82, ssmk=84, ssmD=86, x=88, wqkv=90, wo=92, out=94, dbg=96, ws=98)
DIAG = False
OPT = {}
def opt(k, d): return OPT.get(k, d)

def srd(a, d, name, nbytes, add=0):
    lo, hi = P[name], P[name] + 1
    if add:
        a(f"s_add_u32 s{d}, s{lo}, {hex(add)}")
        a(f"s_addc_u32 s{d+1}, s{hi}, 0")
    else:
        a(f"s_mov_b32 s{d}, s{lo}")
        a(f"s_mov_b32 s{d+1}, s{hi}")
    a(f"s_mov_b32 s{d+2}, {hex(nbytes)}")
    a(f"s_mov_b32 s{d+3}, 0x00020000")

def prologue(a, nwg, endlabel):
    a(f"s_cmp_ge_u32 s2, {nwg}")
    a(f"s_cbranch_scc1 {endlabel}")
    a("s_load_dwordx16 s[76:91], s[0:1], 0")
    a("s_load_dwordx8 s[92:99], s[0:1], 64")
    if DIAG:
        a("s_memtime s[4:5]")
        a("s_memrealtime s[6:7]")
    a("v_lshrrev_b32 v1, 6, v0")
    a("v_and_b32 v0, 63, v0")
    a("v_readfirstlane_b32 s3, v1")

def stamp(a, n):
    if DIAG:
        a(f"s_memtime s[{72+2*n}:{73+2*n}]")
        a("s_waitcnt lgkmcnt(0)")

def stamp_end(a, kid):
    if not DIAG: return
    a("s_waitcnt vmcnt(0) lgkmcnt(0)")
    a("s_memtime s[24:25]")
    a("s_memrealtime s[26:27]")
    srd(a, 8, "ws", MB, 64 * MB + kid * MB)
    a("s_lshl_b32 s28, s2, 3")
    a("s_add_u32 s28, s28, s3")
    a("s_lshl_b32 s28, s28, 5")
    a("s_waitcnt lgkmcnt(0)")
    a("v_mov_b32 v1, s28")
    for i, r in enumerate((4, 6, 24, 26, 72, 74, 72, 74)):
        a(f"v_mov_b32 v{4+i}, s{r}")
    a("buffer_store_dwordx4 v[4:7], v1, s[8:11], 0 offen")
    a("buffer_store_dwordx4 v[8:11], v1, s[8:11], 0 offen offset:16")

def unpack(a, dst, src, hi):
    if hi: a(f"v_and_b32 v{dst}, 0xffff0000, v{src}")
    else: a(f"v_lshlrev_b32 v{dst}, 16, v{src}")

G1_ST = 40960
def g1_decode(a):
    a("s_and_b32 s22, s2, 7")
    a("s_lshr_b32 s23, s2, 3")
    a("s_and_b32 s24, s22, 1")
    a("s_lshl_b32 s24, s24, 3")
    a("s_and_b32 s25, s23, 7")
    a("s_add_u32 s24, s24, s25")
    a("s_lshr_b32 s25, s22, 1")
    a("s_lshl_b32 s25, s25, 2")
    a("s_lshr_b32 s26, s23, 3")
    a("s_add_u32 s25, s25, s26")

def g1_consumer(a, NS):
    ST = G1_ST
    XA, WA, F0, ACC, DUM = 8, 8 + 2 * NS, 24, 104, 200
    a("s_and_b32 s26, s3, 1")
    a("s_lshr_b32 s27, s3, 1")
    pf = opt("pf", 1)
    if pf:
        a("v_and_b32 v2, 7, v0")
        a("v_lshrrev_b32 v3, 3, v0")
        a("v_lshlrev_b32 v2, 11, v2")
        a("v_lshl_add_u32 v2, v3, 7, v2")
        a("s_lshl_b32 s28, s2, 14")
        a("v_lshrrev_b32 v3, 4, v0")
        a(f"v_mul_u32_u24 v3, {64*6144}, v3")
        a("v_and_b32 v4, 15, v0")
        a("v_min_u32 v4, 11, v4")
        a("v_lshl_add_u32 v3, v4, 7, v3")
        a("s_mul_i32 s29, s2, 1536")
        a("s_cmp_eq_u32 s27, 0")
        a("s_cselect_b32 s34, s28, s29")
        a("s_movk_i32 s30, 1024")
        a(f"s_cselect_b32 s35, s30, {4*64*6144}")
        a("s_cselect_b32 s36, 2, 4")
        a("s_cselect_b64 vcc, -1, 0")
        a(f"v_cndmask_b32 v{DUM+1}, v3, v2, vcc")
        if pf == 2:
            a("s_lshl_b32 s30, s26, 6")
            a("s_add_u32 s34, s34, s30")
        else:
            a("s_cmp_eq_u32 s26, 0")
            a("s_cselect_b32 s36, s36, 0")
    a("s_waitcnt lgkmcnt(0)")
    srd(a, 16, "ws", 12 * MB)
    def prefetch(tag):
        if not pf: return
        a("s_cmp_eq_u32 s36, 0")
        a(f"s_cbranch_scc1 g1_pf{tag}")
        a(f"buffer_load_dword v{DUM}, v{DUM+1}, s[20:23], s34 offen")
        a("s_add_u32 s34, s34, s35")
        a("s_sub_u32 s36, s36, 1")
        a.label(f"g1_pf{tag}")
    if pf:
        a("s_cmp_eq_u32 s27, 0")
        a(f"s_cselect_b32 s20, s{P['x']}, s{P['wqkv']}")
        a(f"s_cselect_b32 s21, s{P['x']+1}, s{P['wqkv']+1}")
        a(f"s_mov_b32 s23, {hex(4*MB)}")
        a(f"s_cselect_b32 s22, s23, {hex(6*MB)}")
        a("s_mov_b32 s23, 0x00020000")
        for i in range(opt("pf0", 1)): prefetch(f"a{i}")
    a("v_and_b32 v2, 15, v0")
    a("v_lshrrev_b32 v3, 4, v0")
    a("v_and_b32 v4, 7, v2")
    a("v_lshrrev_b32 v5, 3, v2")
    a("v_lshl_add_u32 v4, v5, 4, v4")
    a("v_lshrrev_b32 v5, 1, v2")
    a("v_xor_b32 v5, v5, v3")
    a("v_lshlrev_b32 v6, 7, v4")
    a("v_lshl_add_u32 v6, v5, 4, v6")
    a("s_lshl_b32 s28, s26, 13")
    a(f"v_add_u32 v{XA}, s28, v6")
    a(f"v_xor_b32 v{XA+1}, 64, v{XA}")
    for st in range(1, NS):
        a(f"v_add_u32 v{XA+2*st}, {st*ST}, v{XA}")
        a(f"v_add_u32 v{XA+2*st+1}, {st*ST}, v{XA+1}")
    a("v_bfe_u32 v5, v0, 2, 2")
    a("v_lshl_add_u32 v6, v3, 3, v5")
    a("v_lshlrev_b32 v6, 7, v6")
    a("v_bfe_u32 v7, v0, 1, 1")
    a("s_lshl_b32 s28, s27, 2")
    a("v_or_b32 v7, s28, v7")
    a("v_lshrrev_b32 v5, 1, v5")
    a("v_lshlrev_b32 v5, 2, v5")
    a("v_xor_b32 v7, v7, v5")
    a("v_and_b32 v5, 1, v3")
    a("v_lshlrev_b32 v5, 1, v5")
    a("v_xor_b32 v7, v7, v5")
    a("v_lshl_add_u32 v6, v7, 4, v6")
    a("v_and_b32 v5, 1, v0")
    a("v_lshl_add_u32 v6, v5, 3, v6")
    a(f"v_add_u32 v{WA}, 16384, v6")
    a(f"v_xor_b32 v{WA+1}, 32, v{WA}")
    for st in range(1, NS):
        a(f"v_add_u32 v{WA+2*st}, {st*ST}, v{WA}")
        a(f"v_add_u32 v{WA+2*st+1}, {st*ST}, v{WA+1}")
    a("v_lshrrev_b32 v5, 1, v3")
    a("v_lshlrev_b32 v5, 10, v5")
    a("v_and_b32 v6, 1, v3")
    a("v_lshl_add_u32 v5, v6, 9, v5")
    a("v_lshl_add_u32 v3, v2, 4, v5")
    a("v_lshl_add_u32 v2, v4, 4, v5")
    for i in range(96):
        a(f"v_mov_b32 v{ACC+i}, 0")
    lg = Tracker(a, "lgkmcnt", 15)
    def xf(sn, x): return F0 + 40 * sn + 4 * x
    def wf(sn, w): return F0 + 40 * sn + 16 + 4 * w
    def reads(sn, st, ks):
        def xr(x): return (f"ds_read_b128 {v(xf(sn,x),4)}, v{XA+2*st+ks} offset:{(x>>1)*4096+(x&1)*1024}", ("x", sn, x))
        def wr(w, h):
            b, ft = w >> 1, w & 1
            return (f"ds_read_b64_tr_b16 {v(wf(sn,w)+2*h,2)}, v{WA+2*st+ft} offset:{b*8192+ks*4096+h*512}", ("w", sn, w))
        r = [xr(0), xr(1), xr(2), xr(3), wr(0, 0), wr(0, 1)]
        for w in range(1, 6): r += [wr(w, 0), wr(w, 1)]
        return r
    def mfma(sn, w, x):
        acc = v(ACC + 4 * (4 * w + x), 4)
        xr_, wr_ = v(xf(sn, x), 4), v(wf(sn, w), 4)
        if w < 4: return f"v_mfma_f32_16x16x32_bf16 {acc}, {wr_}, {xr_}, {acc}"
        return f"v_mfma_f32_16x16x32_bf16 {acc}, {xr_}, {wr_}, {acc}"
    a("s_barrier")
    stamp(a, 0)
    for t, g in reads(0, 0, 0): lg.issue(t, g)
    UN = NS if 16 % NS == 0 else None
    tiles = list(range(16))
    loop = opt("g1loop", 1)
    tcn = [0]
    def tile_code(st, last=False):
        for ks in range(2):
            cur, nxt = ks, ks ^ 1
            if ks == 0: nr = reads(nxt, st, 1)
            else: nr = [] if last else reads(nxt, (st + 1) % NS, 0)
            start = 0 if ks == 0 else opt("g1bar", 4)
            nslots = 24 - start - opt("g1tail", 2)
            slots = sorted(set(start + (i * nslots) // 16 for i in range(16)))
            assert len(slots) == 16
            m = 0
            for w in range(6):
                for x in range(4):
                    if m % 8 == 0:
                        lg.need(*([("x", cur, y) for y in range(4)] + [("w", cur, w), ("w", cur, w + 1)]))
                    if ks == 1 and m == start and not last:
                        lg.drain()
                    a(mfma(cur, w, x))
                    if ks == 1 and m == start and not last:
                        a("s_barrier")
                    if m in slots and nr:
                        t, g = nr.pop(0); lg.issue(t, g)
                    if ks == 0 and m == 23:
                        tcn[0] += 1; prefetch(f"t{tcn[0]}")
                    m += 1
            assert not nr
    nloop = 15 // NS
    a(f"s_mov_b32 s29, {nloop}")
    q0 = list(lg.q)
    a.label("g1_cloop")
    for st in range(NS): tile_code(st)
    assert lg.q == q0, (lg.q, q0)
    a("s_sub_u32 s29, s29, 1")
    a("s_cmp_lg_u32 s29, 0")
    a("s_cbranch_scc1 g1_cloop")
    for kt in range(nloop * NS, 16): tile_code(kt % NS, last=(kt == 15))
    stamp(a, 1)
    a("s_lshl_b32 s31, s24, 2")
    a("s_lshl_b32 s30, s26, 1")
    a("s_add_u32 s37, s30, s31")
    for b in range(3):
        a(f"s_add_u32 s30, s25, {opt('skew', 0)*b}")
        a("s_and_b32 s30, s30, 15")
        a("s_lshl_b32 s30, s30, 1")
        a("s_add_u32 s30, s30, s27")
        a("s_lshl_b32 s30, s30, 6")
        a("s_add_u32 s30, s30, s37")
        if b == 0:
            a("s_lshl_b32 s31, s30, 11")
        else:
            r = 32 + 2 * (b - 1)
            a(f"s_lshl_b32 s{r}, s30, 12")
            a(f"s_add_u32 s{r}, s{r}, {hex(WS_KV)}")
            a(f"s_add_u32 s{r+1}, s{r}, 4096")
    n = 0
    sf = opt("g1st", "")
    def pack(d, r0, r1):
        a(f"v_cvt_pk_bf16_f32 v{d}, v{r0}, v{r0+1}")
        a(f"v_cvt_pk_bf16_f32 v{d+1}, v{r0+2}, v{r0+3}")
        a(f"v_cvt_pk_bf16_f32 v{d+2}, v{r1}, v{r1+1}")
        a(f"v_cvt_pk_bf16_f32 v{d+3}, v{r1+2}, v{r1+3}")
    for b in range(2):
        for x in range(4):
            d = F0 + 4 * n; n += 1
            pack(d, ACC + 4 * (4 * (2 * b) + x), ACC + 4 * (4 * (2 * b + 1) + x))
            if b == 0:
                a(f"buffer_store_dwordx4 {v(d,4)}, v2, s[16:19], s31 offen offset:{(x>>1)*2048+(x&1)*128} {sf}")
            else:
                a(f"buffer_store_dwordx4 {v(d,4)}, v2, s[16:19], s{32+(x>>1)} offen offset:{(x&1)*128} {sf}")
    for b2 in range(2):
        for ft in range(2):
            d = F0 + 4 * n; n += 1
            pack(d, ACC + 4 * (4 * (4 + ft) + 2 * b2), ACC + 4 * (4 * (4 + ft) + 2 * b2 + 1))
            a(f"buffer_store_dwordx4 {v(d,4)}, v3, s[16:19], s{34+b2} offen offset:{2048+ft*256} {sf}")

def g1_loader(a, NS):
    ST = G1_ST
    D = NS - 1
    a("s_sub_u32 s26, s3, 4")
    a("v_lshrrev_b32 v2, 3, v0")
    a("v_and_b32 v3, 7, v0")
    a("v_lshrrev_b32 v4, 4, v0")
    a("v_xor_b32 v5, v3, v4")
    a("v_lshlrev_b32 v6, 11, v2")
    a("v_lshl_add_u32 v8, v5, 4, v6")
    a("v_xor_b32 v9, 64, v8")
    a("v_and_b32 v4, 1, v4")
    a("v_lshlrev_b32 v4, 2, v4")
    a("v_xor_b32 v5, v3, v4")
    a("v_mul_u32_u24 v6, 6144, v2")
    a("v_lshl_add_u32 v10, v5, 4, v6")
    a("v_xor_b32 v11, 32, v10")
    a("s_lshl_b32 s27, s24, 7")
    a("s_lshl_b32 s28, s26, 5")
    a("s_add_u32 s27, s27, s28")
    a("s_lshl_b32 s27, s27, 11")
    a("s_lshl_b32 s28, s26, 12")
    a("s_mul_i32 s29, s26, 6")
    a("s_lshl_b32 s30, s29, 10")
    a("s_add_u32 s30, s30, 16384")
    for j in range(6):
        a(f"s_add_u32 s31, s29, {j}")
        a("s_lshr_b32 s32, s31, 3")
        a("s_and_b32 s31, s31, 7")
        a(f"s_mul_i32 s31, s31, {8*6144}")
        a(f"s_mul_i32 s34, s32, {opt('skew', 0)}")
        a("s_add_u32 s34, s34, s25")
        a("s_and_b32 s34, s34, 15")
        a("s_lshl_b32 s34, s34, 7")
        a("s_lshl_b32 s32, s32, 11")
        a("s_add_u32 s31, s31, s32")
        a(f"s_add_u32 s{40+j}, s31, s34")
    a("s_waitcnt lgkmcnt(0)")
    srd(a, 8, "x", 4 * MB)
    srd(a, 12, "wqkv", 6 * MB)
    vm = Tracker(a, "vmcnt", 63)
    rot = opt("rot", 0)
    if rot:
        a(f"s_mul_i32 s46, s25, {opt('rotc', 5)}")
        a(f"s_mul_i32 s47, s24, {opt('rotm', 1)}")
        a("s_add_u32 s46, s46, s47")
        a(f"s_and_b32 s46, s46, {rot-1}")
    def issue(kt):
        slot = kt % NS
        if rot:
            a(f"s_add_u32 s47, s46, {kt % rot}")
            a(f"s_and_b32 s47, s47, {rot-1}")
            a(f"s_add_u32 s47, s47, {kt - kt % rot}")
            a("s_lshl_b32 s37, s47, 7")
            a("s_add_u32 s37, s37, s27")
            a(f"s_mul_i32 s47, s47, {64*6144}")
        for j in range(4):
            a(f"s_add_u32 m0, s28, {slot*ST + j*1024}")
            if rot: a(f"s_add_u32 s33, s37, {j*16384}")
            else: a(f"s_add_u32 s33, s27, {j*16384 + kt*128}")
            vm.issue(f"buffer_load_dwordx4 v{8+(j>>1)}, s[8:11], s33 offen lds", ("t", kt))
        for j in range(6):
            a(f"s_add_u32 m0, s30, {slot*ST + j*1024}")
            if rot: a(f"s_add_u32 s33, s{40+j}, s47")
            else: a(f"s_add_u32 s33, s{40+j}, {kt*64*6144}")
            vm.issue(f"buffer_load_dwordx4 v{10+(j&1)}, s[12:15], s33 offen lds", ("t", kt))
    KR, VR, WR, WF, T, OUT = 16, 38, 54, 62, 78, 108
    nt = opt("prent", "nt")
    def pre_loads():
        srd(a, 16, "k", 4 * MB)
        srd(a, 20, "v", 4 * MB)
        srd(a, 48, "shk", 8192)
        srd(a, 52, "ws", 4 * MB, WS_UT)
        a("s_and_b32 s35, s2, 15")
        a("s_lshr_b32 s36, s2, 4")
        a("s_lshl_b32 s36, s36, 2")
        a("s_add_u32 s36, s36, s26")
        a("s_lshl_b32 s35, s35, 6")
        a("s_lshl_b32 s36, s36, 5")
        a("v_and_b32 v2, 15, v0")
        a("v_lshrrev_b32 v3, 4, v0")
        a("v_lshl_add_u32 v4, v2, 2, s35")
        a("v_lshl_add_u32 v5, v3, 3, s36")
        a("v_lshlrev_b32 v6, 11, v5")
        a("v_lshl_add_u32 v6, v4, 1, v6")
        a("v_lshlrev_b32 v7, 3, v4")
        a("v_lshlrev_b32 v12, 12, v4")
        a("v_lshl_add_u32 v12, v5, 1, v12")
        for j in range(2):
            vm.issue(f"buffer_load_dwordx4 {v(WR+4*j,4)}, v7, s[48:51], 0 offen offset:{16*j}", "pre")
        for r in range(11):
            if r % 2 == 1 or r == 0:
                a(f"v_add_u32 v13, {((r-3)*2048) & 0xffffffff}, v6")
            o = 0 if (r % 2 == 1 or r == 0) else 2048
            vm.issue(f"buffer_load_dwordx2 {v(KR+2*r,2)}, v13, s[16:19], 0 offen offset:{o} {nt}", "pre")
        for r in range(8):
            if r % 2 == 0: a(f"v_add_u32 v13, {r*2048}, v6")
            vm.issue(f"buffer_load_dwordx2 {v(VR+2*r,2)}, v13, s[20:23], 0 offen offset:{(r%2)*2048} {nt}", "pre")
    def pre_chunk(c):
        vm.need("pre")
        dw, hi = c // 2, c % 2
        for j in range(4): unpack(a, WF + j, WR + 2 * c + j // 2, j % 2)
        for r in range(11): unpack(a, T + r, KR + 2 * r + dw, hi)
        for r in range(8): unpack(a, T + 11 + r, VR + 2 * r + dw, hi)
        for r in range(8): a(f"v_mul_f32 v{T+19+r}, v{T+r}, v{WF+3}")
        for j in (2, 1, 0):
            for r in range(8): a(f"v_fmac_f32 v{T+19+r}, v{T+r+3-j}, v{WF+j}")
        for r in range(8): a(f"v_mul_f32 v{T+19+r}, v{T+19+r}, v{T+11+r}")
        for p in range(4): a(f"v_cvt_pk_bf16_f32 v{OUT+4*c+p}, v{T+19+2*p}, v{T+19+2*p+1}")
        a(f"v_add_u32 v13, {c*4096}, v12")
        vm.issue(f"buffer_store_dwordx4 {v(OUT+4*c,4)}, v13, s[52:55], 0 offen {opt('utst','')}", "prest")
    P0 = opt("p0", 13)
    stamp(a, 0)
    for kt in range(2): issue(kt)
    nxt = 2
    for kt in range(16):
        vm.need(("t", kt))
        if kt == 0: stamp(a, 1)
        a("s_barrier")
        lim = min(kt + D, 15)
        cnt = 0
        while nxt <= lim and cnt < 2:
            issue(nxt); nxt += 1; cnt += 1
        if kt == P0: pre_loads()
    if P0 < 16:
        for c in range(4): pre_chunk(c)

def gen_k1():
    NS = opt("ns", 3)
    a = Asm()
    prologue(a, 256, "k1_end")
    g1_decode(a)
    a("s_cmp_ge_u32 s3, 4")
    a("s_cbranch_scc1 k1_loader")
    g1_consumer(a, NS)
    stamp_end(a, 0)
    a("s_endpgm")
    a.label("k1_loader")
    g1_loader(a, NS)
    stamp_end(a, 0)
    a.label("k1_end")
    a("s_endpgm")
    return kernel_text("k1_kernel", a, 256), NS * G1_ST

def attn_setup(a):
    a("v_lshlrev_b32 v2, 4, v0")
    a("v_and_b32 v5, 31, v0")
    a("v_lshrrev_b32 v6, 5, v0")
    a("v_lshlrev_b32 v7, 2, v6")
    a("v_sub_u32 v7, v5, v7")
    for i in range(16):
        a(f"v_cmp_le_i32 s[{40+2*i}:{41+2*i}], {8*(i//4)+i%4}, v7")
    a("v_lshrrev_b32 v7, 4, v5")
    a("v_lshlrev_b32 v7, 10, v7")
    a("v_lshl_add_u32 v7, v6, 8, v7")
    a("v_and_b32 v5, 15, v5")
    a("v_lshl_add_u32 v3, v5, 4, v7")
    C = 0.17677669529663687 * 1.4426950408889634
    cb = struct.unpack("<I", struct.pack("<f", C))[0]
    a(f"s_mov_b32 s36, {hex(cb)}")
    a(f"s_mov_b32 s37, {hex(cb)}")

def attn_unit(a, tag, kvbase):
    Q, KV, S, O, T = 8, 16, 88, 232, 248
    M0 = 40
    pk = opt("pk", 0)
    lg = Tracker(a, "lgkmcnt", 15)
    a("s_lshl_b32 s26, s39, 11")
    a(f"s_add_u32 s26, s26, {kvbase}")
    a("v_add_u32 v4, s26, v2")
    order = [8, 0, 1, 2, 3, 4, 5, 6, 7]
    NB = 9
    def kread(n):
        j = order[n]
        r = KV + 8 * (n % NB)
        lg.issue(f"ds_read_b128 {v(r,4)}, v4 offset:{j*2048}", ("k", j))
        lg.issue(f"ds_read_b128 {v(r+4,4)}, v4 offset:{j*2048+1024}", ("k", j))
    def vread(n):
        j = order[n]
        r = KV + 8 * (n % NB)
        lg.issue(f"ds_read_b128 {v(r,4)}, v4 offset:{32768+j*2048}", ("v", j))
        lg.issue(f"ds_read_b128 {v(r+4,4)}, v4 offset:{32768+j*2048+1024}", ("v", j))
    for n in range(4): kread(n)
    MK = S + 128
    mx = [False, False]
    def maxops(j):
        b = S + 16 * j
        for i in range(0, 16, 2):
            k = (i >> 1) & 1
            if not mx[k]:
                a(f"v_max_f32 v{T+k}, v{b+i}, v{b+i+1}"); mx[k] = True
            else:
                a(f"v_max3_f32 v{T+k}, v{T+k}, v{b+i}, v{b+i+1}")
    def merge():
        for i in range(16):
            a(f"v_cndmask_b32 v{S+i}, v{S+i}, v{S+128+i}, s[{M0+2*i}:{M0+2*i+1}]")
        a("v_mov_b32 v6, 0xffff")
        a("v_mov_b32 v7, 0xffff0000")
        for j in range(8):
            a(f"v_cndmask_b32 v{MK+j}, 0, v6, s[{M0+4*j}:{M0+4*j+1}]")
            a(f"v_cndmask_b32 v{MK+8+j}, 0, v7, s[{M0+4*j+2}:{M0+4*j+3}]")
        for j in range(8):
            a(f"v_or_b32 v{MK+j}, v{MK+j}, v{MK+8+j}")
    ool = []
    for n, j in enumerate(order):
        lg.need(("k", j))
        acc = v(S + 16 * j, 16)
        r = KV + 8 * (n % NB)
        if j < 8:
            a(f"s_cmp_lt_u32 s25, {8-j}")
            a(f"s_cbranch_scc1 {tag}_inv{j}")
        a(f"v_mfma_f32_32x32x16_bf16 {acc}, {v(r,4)}, {v(Q,4)}, 0")
        a(f"v_mfma_f32_32x32x16_bf16 {acc}, {v(r+4,4)}, {v(Q+4,4)}, {acc}")
        if j < 8:
            a.label(f"{tag}_back{j}")
            ool.append(j)
        if n + 4 < 9: kread(n + 4)
        if n == 3: merge(); maxops(0)
        if n >= 4: maxops(order[n - 2])
    maxops(6); maxops(7)
    a(f"v_max_f32 v{T}, v{T}, v{T+1}")
    a(f"v_mov_b32 v{T+1}, v{T}")
    a(f"v_permlane32_swap_b32 v{T}, v{T+1}")
    a(f"v_max_f32 v{T}, v{T}, v{T+1}")
    a(f"v_mul_f32 v{T}, s36, v{T}")
    a(f"v_mov_b32 v{T+1}, v{T}")
    for k in range(4): a(f"v_mov_b32 v{T+2+k}, 0")
    a("s_cmp_lg_u32 s38, 0")
    a(f"s_cbranch_scc1 {tag}_vsk")
    a("s_waitcnt vmcnt(0)")
    lds_signal(a, FLAG_V)
    a.label(f"{tag}_vsk")
    lds_wait(a, tag + "_vw", FLAG_V, 4)
    for n in range(3): vread(n)
    nv = [3]
    oacc = v(O, 16)
    first = [True]
    def pv(j, pb):
        lg.need(("v", j))
        r = KV + 8 * (order.index(j) % NB)
        for t in range(2):
            a(f"v_mfma_f32_32x32x16_bf16 {oacc}, {v(r+4*t,4)}, {v(pb+4*t,4)}, {'0' if first[0] else oacc}")
            first[0] = False
        if nv[0] < 9: vread(nv[0]); nv[0] += 1
    pend = None
    for j in range(8):
        b = S + 16 * j
        if pk:
            for i in range(0, 16, 2):
                a(f"v_pk_fma_f32 {v(b+i,2)}, {v(b+i,2)}, s[36:37], {v(T,2)} neg_lo:[0,0,1] neg_hi:[0,0,1]")
        else:
            for i in range(16):
                a(f"v_fma_f32 v{b+i}, v{b+i}, s36, -v{T}")
        if pend:
            for x in pend: pv(*x)
            pend = None
        for i in range(16):
            a(f"v_exp_f32 v{b+i}, v{b+i}")
        if pk:
            for i in range(0, 16, 2):
                k = T + 2 + (i & 2)
                a(f"v_pk_add_f32 {v(k,2)}, {v(k,2)}, {v(b+i,2)}")
        else:
            for i in range(16):
                a(f"v_add_f32 v{T+2+(i&3)}, v{T+2+(i&3)}, v{b+i}")
        for i in range(8):
            a(f"v_cvt_pk_bf16_f32 v{b+i}, v{b+2*i}, v{b+2*i+1}")
        if j == 0:
            for i in range(8):
                a(f"v_and_b32 v{S+8+i}, v{MK+i}, v{S+i}")
                a(f"v_bfi_b32 v{S+i}, v{MK+i}, 0, v{S+i}")
            pend = [(8, S + 8), (0, S)]
        else:
            pend = [(j, b)]
    a(f"v_add_f32 v{T+2}, v{T+2}, v{T+3}")
    a(f"v_add_f32 v{T+4}, v{T+4}, v{T+5}")
    for x in pend: pv(*x)
    a(f"v_add_f32 v{T+2}, v{T+2}, v{T+4}")
    a(f"v_mov_b32 v{T+3}, v{T+2}")
    a(f"v_permlane32_swap_b32 v{T+2}, v{T+3}")
    a(f"v_add_f32 v{T+2}, v{T+2}, v{T+3}")
    a(f"v_rcp_f32 v{T+2}, v{T+2}")
    a("s_lshl_b32 s27, s25, 5")
    a("s_add_u32 s27, s27, s24")
    a("s_lshl_b32 s27, s27, 11")
    for i in range(16):
        a(f"v_mul_f32 v{O+i}, v{O+i}, v{T+2}")
    for i in range(8):
        a(f"v_cvt_pk_bf16_f32 v{S+i}, v{O+2*i}, v{O+2*i+1}")
    sf = opt("ost", "")
    a(f"buffer_store_dwordx4 {v(S,4)}, v3, s[16:19], s27 offen {sf}")
    a(f"buffer_store_dwordx4 {v(S+4,4)}, v3, s[16:19], s27 offen offset:512 {sf}")
    def out_of_line():
        for j in ool:
            a.label(f"{tag}_inv{j}")
            for i in range(16):
                a(f"v_mov_b32 v{S+16*j+i}, 0xf149f2ca")
            a(f"s_branch {tag}_back{j}")
    return out_of_line

FLAG_K, FLAG_V = 0, 4
def lds_signal(a, off):
    a("v_mov_b32 v5, 0")
    a("v_mov_b32 v6, 1")
    a("s_mov_b64 exec, 1")
    a(f"ds_add_u32 v5, v6 offset:{off}")
    a("s_mov_b64 exec, -1")
def lds_wait(a, tag, off, n):
    a("v_mov_b32 v5, 0")
    a.label(tag)
    a(f"ds_read_b32 v6, v5 offset:{off}")
    a("s_waitcnt lgkmcnt(0)")
    a("v_readfirstlane_b32 s27, v6")
    a(f"s_cmp_ge_u32 s27, {n}")
    a(f"s_cbranch_scc1 {tag}_ok")
    a("s_sleep 1")
    a(f"s_branch {tag}")
    a.label(tag + "_ok")

CONV_LDS = 8704
def conv_wave(a, ldsbase_s, ch_s, barrier=False):
    UB, HB = 256, 4416
    srd(a, 8, "ssmk", 4 * MB)
    srd(a, 12, "ws", 4 * MB, WS_UT)
    srd(a, 16, "ws", 4 * MB, WS_YT)
    srd(a, 20, "ssmD", 2048)
    L = ldsbase_s
    a("v_lshlrev_b32 v2, 4, v0")
    a(f"s_lshl_b32 s26, s{ch_s}, 12")
    a(f"s_add_u32 m0, s{L}, {HB}")
    for j in range(4):
        a(f"buffer_load_dwordx4 v2, s[8:11], s26 offen offset:{j*1024} {opt('hnt','nt')} lds")
    a(f"s_add_u32 m0, s{L}, {UB}")
    for j in range(4):
        a(f"buffer_load_dwordx4 v2, s[12:15], s26 offen offset:{j*1024} lds")
    a(f"s_lshl_b32 s27, s{ch_s}, 1")
    a("v_mov_b32 v3, s27")
    a("v_mov_b32 v4, s26")
    a("buffer_load_ushort v12, v3, s[20:23], 0 offen")
    a("buffer_load_ushort v13, v4, s[8:11], 0 offen")
    if barrier: a("s_barrier")
    a("v_mov_b32 v4, 0")
    a(f"v_lshl_add_u32 v3, v0, 2, s{L}")
    a("ds_write_b32 v3, v4")
    a("v_and_b32 v5, 15, v0")
    a(f"v_lshl_add_u32 v5, v5, 2, s{L}")
    a(f"ds_write_b32 v5, v4 offset:{UB+4096}")
    a("v_lshrrev_b32 v4, 4, v0")
    a("v_bfe_u32 v5, v0, 2, 2")
    a("v_and_b32 v6, 3, v0")
    a("v_lshlrev_b32 v7, 2, v6")
    a("v_sub_u32 v7, v7, v5")
    a("v_lshlrev_b32 v8, 3, v4")
    a("v_sub_u32 v7, v7, v8")
    a("v_lshlrev_b32 v7, 3, v7")
    a(f"v_add_u32 v7, {UB+24-32}, v7")
    a(f"v_add_u32 v10, s{L}, v7")
    a("v_add3_u32 v7, v8, v5, v6")
    a("v_lshlrev_b32 v7, 3, v7")
    a(f"v_add_u32 v7, {HB-24}, v7")
    a(f"v_add_u32 v11, s{L}, v7")
    a("v_cmp_eq_u32 s[28:29], 63, v0")
    a(f"v_mov_b32 v3, s{L}")
    a("v_mov_b32 v14, 0")
    B0, A0, ACC, E = 16, 80, 96, 224
    a("s_waitcnt vmcnt(0)")
    stamp(a, 0)
    a("v_lshlrev_b32 v12, 16, v12")
    a("v_lshlrev_b32 v13, 16, v13")
    a("v_add_f32 v12, v12, v13")
    a("v_cvt_pk_bf16_f32 v12, v12, v12")
    lg = Tracker(a, "lgkmcnt", 15)
    lg.issue(f"ds_write_b16 v3, v12 offset:{HB}", "misc")
    def aread(d):
        r = A0 + 4 * (d % 4)
        lg.issue(f"ds_read_b64_tr_b16 {v(r,2)}, v10 offset:{128*d+32}", ("a", d))
        lg.issue(f"ds_read_b64_tr_b16 {v(r+2,2)}, v10 offset:{128*d}", ("a", d))
    def bread(sN):
        lg.issue(f"ds_read_b64_tr_b16 {v(B0+4*sN,2)}, v11 offset:{256*sN}", ("b", sN))
        lg.issue(f"ds_read_b64_tr_b16 {v(B0+4*sN+2,2)}, v11 offset:{256*sN+32}", ("b", sN))
    aread(0)
    for sN in range(5): bread(sN)
    nb = 5
    started = set()
    def epi(T):
        r = ACC + 4 * T; p = ACC + 4 * (T - 1)
        e = E + 3 * (T % 2)
        ops = []
        for lvl, x in enumerate((3, 2, 1)):
            prev = f"v{p+x}" if T > 0 else "v14"
            ops.append(f"v_cndmask_b32 v{e+lvl}, v{r+x}, {prev}, s[28:29]")
            ops.append(f"v_add_f32_dpp v{r+x-1}, v{e+lvl}, v{r+x-1} wave_ror:1 row_mask:0xf bank_mask:0xf")
        return ops
    pending = []
    for d in range(32):
        n = (31 - d) // 2 + 1
        if d >= 3: pending += epi(d - 3)
        for sN in range(n):
            T = d + 2 * sN
            lg.need(("a", d), ("b", sN))
            acc = v(ACC + 4 * T, 4)
            c = acc if T in started else "0"
            started.add(T)
            a(f"v_mfma_f32_16x16x32_bf16 {acc}, {v(A0+4*(d%4),4)}, {v(B0+4*sN,4)}, {c}")
            if d == 0 and nb < 16: bread(nb); nb += 1
            if d == 0 and sN in (11, 13): aread(1 if sN == 11 else 2)
            if d >= 0 and sN == (14 if d == 0 else 0) and d + 3 < 32: aread(d + 3)
            if pending and sN % 2 == 1: a(pending.pop(0))
            if pending and d >= 20: a(pending.pop(0))
    for T in range(29, 32): pending += epi(T)
    for x in pending: a(x)
    stamp(a, 1)
    for c in range(4):
        for p in range(4):
            T = 8 * c + 2 * p
            a(f"v_cvt_pk_bf16_f32 v{B0+4*c+p}, v{ACC+4*T}, v{ACC+4*T+4}")
        a(f"buffer_store_dwordx4 {v(B0+4*c,4)}, v2, s[16:19], s26 offen offset:{1024*c} {opt('ytst','')}")

def gen_k2():
    a = Asm()
    KVB = 1024
    CVB = KVB + 65536
    prologue(a, 256, "k2_end")
    a("s_cmp_ge_u32 s3, 4")
    a("s_cbranch_scc1 k2_conv")
    a("s_and_b32 s22, s2, 7")
    a("s_lshr_b32 s23, s2, 3")
    a("s_lshl_b32 s24, s22, 2")
    a("s_lshr_b32 s25, s23, 3")
    a("s_add_u32 s24, s24, s25")
    a("s_and_b32 s25, s23, 7")
    a("s_lshl_b32 s25, s25, 3")
    a("v_lshlrev_b32 v2, 4, v0")
    a("s_lshl_b32 s26, s24, 6")
    a("s_add_u32 s26, s26, s25")
    a("s_lshl_b32 s27, s3, 2")
    a("s_add_u32 s27, s27, s26")
    a("s_lshl_b32 s27, s27, 12")
    a(f"s_sub_u32 s27, s27, {8*4096}")
    a("v_add_u32 v4, s27, v2")
    a("s_lshl_b32 s28, s3, 13")
    a("s_add_u32 s25, s25, s3")
    a("s_mov_b32 s39, s3")
    a("v_mov_b32 v5, 0")
    a("v_mov_b32 v6, 0")
    a("v_mov_b32 v7, 0")
    a("ds_write_b64 v5, v[6:7]")
    a("s_waitcnt lgkmcnt(0)")
    srd(a, 8, "ws", 4 * MB, WS_Q)
    srd(a, 12, "ws", 8 * MB, WS_KV)
    srd(a, 16, "ws", 4 * MB, WS_O)
    vm = Tracker(a, "vmcnt", 63)
    for part in range(2):
        for i in range(4):
            a(f"v_add_u32 v5, {i*4096 + part*2048}, v4")
            a(f"s_add_u32 m0, s28, {KVB + part*32768 + i*2048}")
            vm.issue("buffer_load_dwordx4 v5, s[12:15], 0 offen lds", part)
            vm.issue("buffer_load_dwordx4 v5, s[12:15], 0 offen offset:1024 lds", part)
        if part == 0:
            a("s_lshl_b32 s26, s24, 6")
            a("s_add_u32 s26, s26, s25")
            a("s_lshl_b32 s27, s26, 11")
            vm.issue("buffer_load_dwordx4 v[8:11], v2, s[8:11], s27 offen", "q")
            vm.issue("buffer_load_dwordx4 v[12:15], v2, s[8:11], s27 offen offset:1024", "q")
            a("s_barrier")
    attn_setup(a)
    vm.need(0, "q")
    lds_signal(a, FLAG_K)
    lds_wait(a, "k2_kw", FLAG_K, 4)
    stamp(a, 0)
    a("s_mov_b32 s38, 0")
    a.label("k2_aloop")
    ool = attn_unit(a, "at", KVB)
    a("s_add_u32 s25, s25, 4")
    a("s_add_u32 s39, s39, 4")
    a("s_add_u32 s38, s38, 1")
    a("s_cmp_lt_u32 s38, 2")
    a("s_cbranch_scc0 k2_adone")
    a("s_lshl_b32 s26, s24, 6")
    a("s_add_u32 s26, s26, s25")
    a("s_lshl_b32 s27, s26, 11")
    a("buffer_load_dwordx4 v[8:11], v2, s[8:11], s27 offen")
    a("buffer_load_dwordx4 v[12:15], v2, s[8:11], s27 offen offset:1024")
    a("s_waitcnt vmcnt(0)")
    a("s_branch k2_aloop")
    a.label("k2_adone")
    stamp_end(a, 1)
    a("s_endpgm")
    ool()
    a.label("k2_conv")
    a("s_sub_u32 s24, s3, 4")
    a(f"s_mul_i32 s25, s24, {CONV_LDS}")
    a(f"s_add_u32 s25, s25, {CVB}")
    a("s_lshl_b32 s30, s2, 2")
    a("s_add_u32 s24, s24, s30")
    a("s_waitcnt lgkmcnt(0)")
    conv_wave(a, 25, 24, barrier=True)
    stamp_end(a, 1)
    a.label("k2_end")
    a("s_endpgm")
    return kernel_text("k2_kernel", a, 256), CVB + 4 * CONV_LDS

def post_block(a, vm, blk_s, regs):
    QR, YR, T, OUT = regs
    a(f"s_and_b32 s28, s{blk_s}, 15")
    a(f"s_lshr_b32 s29, s{blk_s}, 4")
    a("s_and_b32 s30, s29, 7")
    a("s_lshr_b32 s29, s29, 3")
    a("v_and_b32 v4, 15, v0")
    a("v_lshrrev_b32 v5, 4, v0")
    a("s_lshl_b32 s29, s29, 6")
    a("v_lshl_add_u32 v4, v4, 2, s29")
    a("s_lshl_b32 s28, s28, 2")
    a("v_add_u32 v5, s28, v5")
    a("s_lshr_b32 s31, s30, 1")
    a("s_lshl_b32 s31, s31, 10")
    a("s_and_b32 s32, s30, 1")
    a("s_lshl_b32 s32, s32, 3")
    a("s_add_u32 s31, s31, s32")
    a("v_lshlrev_b32 v6, 12, v4")
    a("v_lshl_add_u32 v6, v5, 4, v6")
    a("v_add_u32 v6, s31, v6")
    a("s_lshl_b32 s31, s30, 8")
    a("v_add_u32 v5, s31, v5")
    a("v_lshlrev_b32 v7, 11, v5")
    a("v_lshl_add_u32 v7, v4, 1, v7")
    a(f"v_lshlrev_b32 v{OUT+8}, 12, v5")
    a(f"v_lshl_add_u32 v{OUT+8}, v4, 1, v{OUT+8}")
    for j in range(4):
        a(f"s_mov_b32 s31, {j*64*2048}")
        vm.issue(f"buffer_load_dwordx2 {v(QR+2*j,2)}, v7, s[20:23], s31 offen {opt('qnt','nt')}", "post")
    for c in range(4):
        a(f"s_mov_b32 s31, {c*4096}")
        vm.issue(f"buffer_load_dwordx2 {v(YR+2*c,2)}, v6, s[48:51], s31 offen", "post")
    def fin():
        vm.need("post")
        for j in range(4):
            for c in range(4):
                unpack(a, T + c, QR + 2 * j + c // 2, c % 2)
                unpack(a, T + 4 + c, YR + 2 * c + j // 2, j % 2)
            for c in range(4): a(f"v_mul_f32 v{T+c}, v{T+c}, v{T+4+c}")
            for p in range(2): a(f"v_cvt_pk_bf16_f32 v{OUT+2*j+p}, v{T+2*p}, v{T+2*p+1}")
            a(f"s_mov_b32 s31, {j*64*4096}")
            vm.issue(f"buffer_store_dwordx2 {v(OUT+2*j,2)}, v{OUT+8}, s[16:19], s31 offen {opt('outst','')}", "postst")
    return fin

def gen_k3():
    a = Asm()
    prologue(a, 256, "k3_end")
    a("s_and_b32 s22, s2, 7")
    a("s_lshr_b32 s23, s2, 3")
    a("s_and_b32 s24, s22, 3")
    a("s_lshl_b32 s24, s24, 2")
    a("s_and_b32 s25, s23, 3")
    a("s_add_u32 s24, s24, s25")
    a("s_lshr_b32 s25, s22, 2")
    a("s_lshl_b32 s25, s25, 3")
    a("s_lshr_b32 s26, s23, 2")
    a("s_add_u32 s25, s25, s26")
    a("s_and_b32 s26, s3, 3")
    a("s_lshr_b32 s27, s3, 2")
    a("v_lshrrev_b32 v2, 3, v0")
    a("v_and_b32 v3, 7, v0")
    a("v_bfe_u32 v4, v0, 4, 1")
    a("v_lshlrev_b32 v4, 2, v4")
    a("v_xor_b32 v3, v3, v4")
    a("v_bfe_u32 v4, v0, 5, 1")
    a("v_lshlrev_b32 v4, 1, v4")
    a("v_xor_b32 v3, v3, v4")
    a("v_lshlrev_b32 v2, 11, v2")
    a("v_lshl_add_u32 v8, v3, 4, v2")
    a("v_lshlrev_b32 v9, 4, v0")
    a("s_lshl_b32 s33, s27, 4")
    a("s_add_u32 s33, s33, s26")
    a("s_lshl_b32 s34, s33, 12")
    a("s_lshl_b32 s33, s33, 16")
    a("s_lshl_b32 s35, s25, 7")
    a("s_add_u32 s33, s33, s35")
    a("s_lshl_b32 s35, s24, 2")
    a("s_add_u32 s35, s35, s26")
    a("s_lshl_b32 s35, s35, 16")
    a("s_lshl_b32 s36, s27, 15")
    a("s_add_u32 s35, s35, s36")
    a("s_waitcnt lgkmcnt(0)")
    srd(a, 8, "ws", 4 * MB, WS_O)
    srd(a, 12, "wo", 2 * MB)
    srd(a, 16, "out", 8 * MB)
    srd(a, 20, "q", 4 * MB)
    srd(a, 48, "ws", 4 * MB, WS_YT)
    vm = Tracker(a, "vmcnt", 63)
    lg = Tracker(a, "lgkmcnt", 15)
    WA, WFR, ACC, OF = 10, 16, 48, 80
    NOF = opt("nof", 12)
    def wdma(c):
        for j in range(4):
            a(f"s_add_u32 m0, s34, {c*16384 + j*1024}")
            a(f"s_add_u32 s37, s33, {c*4*65536 + j*16384}")
            vm.issue("buffer_load_dwordx4 v8, s[12:15], s37 offen lds", ("w", c))
    def oload(h):
        r = OF + 8 * (h % NOF)
        a(f"s_add_u32 s38, s35, {h*2048}")
        o = 0
        vm.issue(f"buffer_load_dwordx4 {v(r,4)}, v9, s[8:11], s38 offen offset:{o}", ("o", h))
        vm.issue(f"buffer_load_dwordx4 {v(r+4,4)}, v9, s[8:11], s38 offen offset:{o+1024}", ("o", h))
    LA = opt("ola", 5)
    wdma(0)
    for h in range(LA): oload(h)
    a("v_lshrrev_b32 v2, 4, v0")
    a("v_lshrrev_b32 v3, 1, v2")
    a("v_and_b32 v2, 1, v2")
    a("v_bfe_u32 v4, v0, 2, 2")
    a("v_lshlrev_b32 v5, 4, v3")
    a("v_lshl_add_u32 v5, v2, 2, v5")
    a("v_add_u32 v5, v5, v4")
    a("v_lshlrev_b32 v5, 7, v5")
    a("v_bfe_u32 v6, v0, 1, 1")
    a("v_lshrrev_b32 v4, 1, v4")
    a("v_lshl_add_u32 v6, v4, 2, v6")
    a("v_lshl_add_u32 v6, v2, 1, v6")
    a("v_lshl_add_u32 v5, v6, 4, v5")
    a("v_and_b32 v6, 1, v0")
    a("v_lshl_add_u32 v5, v6, 3, v5")
    a("s_lshl_b32 s36, s27, 16")
    a(f"v_add_u32 v{WA}, s36, v5")
    for n in range(1, 4): a(f"v_xor_b32 v{WA+n}, {32*n}, v{WA}")
    a("s_lshl_b32 s39, s2, 3")
    a("s_add_u32 s39, s39, s3")
    def wreads(h):
        sn = h & 1
        r = []
        for n in range(4):
            for x in range(2):
                r.append((f"ds_read_b64_tr_b16 {v(WFR+16*sn+4*n+2*x,2)}, v{WA+n} offset:{h*4096+x*1024}", ("w", h, n)))
        return r
    started = False
    for h in range(16):
        if h % 4 == 0:
            vm.need(("w", h // 4))
            a("s_barrier")
            if h == 0: stamp(a, 0)
            for t, g in wreads(h): lg.issue(t, g)
        nr = wreads(h + 1) if (h + 1) % 4 != 0 else []
        vm.need(("o", h))
        for n in range(4):
            for u in range(2):
                lg.need(("w", h, n))
                acc = v(ACC + 4 * (4 * u + n), 4)
                a(f"v_mfma_f32_16x16x32_bf16 {acc}, {v(WFR+16*(h&1)+4*n,4)}, {v(OF+8*(h%NOF)+4*u,4)}, {acc if started else '0'}")
                if nr:
                    t, g = nr.pop(0); lg.issue(t, g)
        started = True
        if h % 4 == 0 and h // 4 + 1 < 4: wdma(h // 4 + 1)
        if h + LA < 16: oload(h + LA)
        if h == opt("postl", 11):
            fin = post_block(a, vm, 39, (OF + 8 * NOF, OF + 8 * NOF + 8, OF + 8 * NOF + 16, OF + 8 * NOF + 24))
    fin()
    stamp(a, 1)
    RS = 272
    a("v_and_b32 v2, 15, v0")
    a("v_lshrrev_b32 v3, 4, v0")
    a("s_lshl_b32 s36, s26, 5")
    a("s_lshl_b32 s37, s27, 7")
    a("s_add_u32 s36, s36, s37")
    a("v_add_u32 v2, s36, v2")
    a(f"v_mul_u32_u24 v2, {RS}, v2")
    a("v_lshl_add_u32 v2, v3, 4, v2")
    a("s_barrier")
    for u in range(2):
        for n in range(4):
            a(f"ds_write_b128 v2, {v(ACC+4*(4*u+n),4)} offset:{u*16*RS+n*64}")
    a("v_lshrrev_b32 v3, 3, v0")
    a("s_lshl_b32 s36, s3, 4")
    a("v_add_u32 v3, s36, v3")
    a("v_and_b32 v4, 7, v0")
    a(f"v_mul_u32_u24 v5, {RS}, v3")
    a("v_lshl_add_u32 v5, v4, 5, v5")
    a("s_lshl_b32 s36, s24, 7")
    a("v_add_u32 v3, s36, v3")
    a("v_lshlrev_b32 v3, 12, v3")
    a("v_lshl_add_u32 v3, v4, 4, v3")
    a("s_lshl_b32 s36, s25, 7")
    a("s_add_u32 s36, s36, 2048")
    a(f"s_add_u32 s37, s36, {8*4096}")
    a("s_waitcnt lgkmcnt(0)")
    a("s_barrier")
    for it in range(2):
        for kh in range(2):
            for x in range(2):
                a(f"ds_read_b128 {v(16+16*it+8*kh+4*x,4)}, v5 offset:{it*8*RS+kh*128*RS+16*x}")
    for it in range(2):
        a(f"s_waitcnt lgkmcnt({4*(1-it)})")
        b = 16 + 16 * it
        for e in range(8): a(f"v_add_f32 v{b+e}, v{b+e}, v{b+8+e}")
        for p in range(4): a(f"v_cvt_pk_bf16_f32 v{48+4*it+p}, v{b+2*p}, v{b+2*p+1}")
        a(f"buffer_store_dwordx4 {v(48+4*it,4)}, v3, s[16:19], s{36+it} offen {opt('outst','')}")
    stamp_end(a, 2)
    a.label("k3_end")
    a("s_endpgm")
    return kernel_text("k3_kernel", a, 256), 131072

HEADER = open("concat_heads__ssm_conv_h3__sliding_block__prompt.s.ref").read().split("; Override")[0]

def emit(launches, kernels, path):
    out = HEADER
    for (k, g, b, l) in launches:
        out += f"; @launch kernel={k} grid=({g},1,1) block=({b},1,1) lds={l}\n"
    out += '.amdgcn_target "amdgcn-amd-amdhsa--gfx950"\n.text\n'
    for c, _ in kernels: out += c
    out += '.section .rodata,"a"\n'
    for _, kd in kernels: out += ".p2align 6\n" + kd
    open(path, "w").write(out)

if __name__ == "__main__":
    DIAG = "--diag" in sys.argv
    for x in sys.argv[2:]:
        if "=" in x:
            k_, v_ = x.split("=")
            OPT[k_] = int(v_) if v_.isdigit() else v_.replace("+", " ").replace("none", "")
    k1, l1 = gen_k1(); k2, l2 = gen_k2(); k3, l3 = gen_k3()
    emit([("k1_kernel", 256, 512, l1), ("k2_kernel", 256, 512, l2), ("k3_kernel", 256, 512, l3)], [k1, k2, k3], sys.argv[1])
```

```python
import sys, struct
from asmdsl import *

MB = 1 << 20
WS_Q, WS_KV, WS_O, WS_UT, WS_YT = 0, 4 * MB, 12 * MB, 16 * MB, 20 * MB
REUSE = True
P = dict(q=76, k=78, v=80, shk=82, ssmk=84, ssmD=86, x=88, wqkv=90, wo=92, out=94, dbg=96, ws=98)
DIAG = False
OPT = {}
def opt(k, d): return OPT.get(k, d)

def srd(a, d, name, nbytes, add=0):
    lo, hi = P[name], P[name] + 1
    if add:
        a(f"s_add_u32 s{d}, s{lo}, {hex(add)}")
        a(f"s_addc_u32 s{d+1}, s{hi}, 0")
    else:
        a(f"s_mov_b32 s{d}, s{lo}")
        a(f"s_mov_b32 s{d+1}, s{hi}")
    a(f"s_mov_b32 s{d+2}, {hex(nbytes)}")
    a(f"s_mov_b32 s{d+3}, 0x00020000")

def prologue(a, nwg, endlabel):
    a(f"s_cmp_ge_u32 s2, {nwg}")
    a(f"s_cbranch_scc1 {endlabel}")
    a("s_load_dwordx16 s[76:91], s[0:1], 0")
    a("s_load_dwordx8 s[92:99], s[0:1], 64")
    if DIAG:
        a("s_memtime s[4:5]")
        a("s_memrealtime s[6:7]")
    a("v_lshrrev_b32 v1, 6, v0")
    a("v_and_b32 v0, 63, v0")
    a("v_readfirstlane_b32 s3, v1")

def stamp(a, n):
    if DIAG:
        a(f"s_memtime s[{72+2*n}:{73+2*n}]")
        a("s_waitcnt lgkmcnt(0)")

def stamp_end(a, kid):
    if not DIAG: return
    a("s_waitcnt vmcnt(0) lgkmcnt(0)")
    a("s_memtime s[24:25]")
    a("s_memrealtime s[26:27]")
    srd(a, 8, "ws", MB, 64 * MB + kid * MB)
    a("s_lshl_b32 s28, s2, 3")
    a("s_add_u32 s28, s28, s3")
    a("s_lshl_b32 s28, s28, 5")
    a("s_waitcnt lgkmcnt(0)")
    a("v_mov_b32 v1, s28")
    for i, r in enumerate((4, 6, 24, 26, 72, 74, 72, 74)):
        a(f"v_mov_b32 v{4+i}, s{r}")
    a("buffer_store_dwordx4 v[4:7], v1, s[8:11], 0 offen")
    a("buffer_store_dwordx4 v[8:11], v1, s[8:11], 0 offen offset:16")

def unpack(a, dst, src, hi):
    if hi: a(f"v_and_b32 v{dst}, 0xffff0000, v{src}")
    else: a(f"v_lshlrev_b32 v{dst}, 16, v{src}")

G1_ST = 40960
def g1_decode(a):
    a("s_and_b32 s22, s2, 7")
    a("s_lshr_b32 s23, s2, 3")
    a("s_and_b32 s24, s22, 1")
    a("s_lshl_b32 s24, s24, 3")
    a("s_and_b32 s25, s23, 7")
    a("s_add_u32 s24, s24, s25")
    a("s_lshr_b32 s25, s22, 1")
    a("s_lshl_b32 s25, s25, 2")
    a("s_lshr_b32 s26, s23, 3")
    a("s_add_u32 s25, s25, s26")

def g1_consumer(a, NS):
    ST = G1_ST
    XA, WA, F0, ACC, DUM = 8, 8 + 2 * NS, 24, 104, 200
    a("s_and_b32 s26, s3, 1")
    a("s_lshr_b32 s27, s3, 1")
    pf = opt("pf", 1)
    if pf:
        a("v_and_b32 v2, 7, v0")
        a("v_lshrrev_b32 v3, 3, v0")
        a("v_lshlrev_b32 v2, 11, v2")
        a("v_lshl_add_u32 v2, v3, 7, v2")
        a("s_lshl_b32 s28, s2, 14")
        a("v_lshrrev_b32 v3, 4, v0")
        a(f"v_mul_u32_u24 v3, {64*6144}, v3")
        a("v_and_b32 v4, 15, v0")
        a("v_min_u32 v4, 11, v4")
        a("v_lshl_add_u32 v3, v4, 7, v3")
        a("s_mul_i32 s29, s2, 1536")
        a("s_cmp_eq_u32 s27, 0")
        a("s_cselect_b32 s34, s28, s29")
        a("s_movk_i32 s30, 1024")
        a(f"s_cselect_b32 s35, s30, {4*64*6144}")
        a("s_cselect_b32 s36, 2, 4")
        a("s_cselect_b64 vcc, -1, 0")
        a(f"v_cndmask_b32 v{DUM+1}, v3, v2, vcc")
        if pf == 2:
            a("s_lshl_b32 s30, s26, 6")
            a("s_add_u32 s34, s34, s30")
        else:
            a("s_cmp_eq_u32 s26, 0")
            a("s_cselect_b32 s36, s36, 0")
    a("s_waitcnt lgkmcnt(0)")
    srd(a, 16, "ws", 4 * MB, WS_Q)
    if REUSE: srd(a, 12, "out", 8 * MB)
    else: srd(a, 12, "ws", 8 * MB, WS_KV)
    def prefetch(tag):
        if not pf: return
        a("s_cmp_eq_u32 s36, 0")
        a(f"s_cbranch_scc1 g1_pf{tag}")
        a(f"buffer_load_dword v{DUM}, v{DUM+1}, s[20:23], s34 offen")
        a("s_add_u32 s34, s34, s35")
        a("s_sub_u32 s36, s36, 1")
        a.label(f"g1_pf{tag}")
    if pf:
        a("s_cmp_eq_u32 s27, 0")
        a(f"s_cselect_b32 s20, s{P['x']}, s{P['wqkv']}")
        a(f"s_cselect_b32 s21, s{P['x']+1}, s{P['wqkv']+1}")
        a(f"s_mov_b32 s23, {hex(4*MB)}")
        a(f"s_cselect_b32 s22, s23, {hex(6*MB)}")
        a("s_mov_b32 s23, 0x00020000")
        for i in range(opt("pf0", 1)): prefetch(f"a{i}")
    a("v_and_b32 v2, 15, v0")
    a("v_lshrrev_b32 v3, 4, v0")
    a("v_and_b32 v4, 7, v2")
    a("v_lshrrev_b32 v5, 3, v2")
    a("v_lshl_add_u32 v4, v5, 4, v4")
    a("v_lshrrev_b32 v5, 1, v2")
    a("v_xor_b32 v5, v5, v3")
    a("v_lshlrev_b32 v6, 7, v4")
    a("v_lshl_add_u32 v6, v5, 4, v6")
    a("s_lshl_b32 s28, s26, 13")
    a(f"v_add_u32 v{XA}, s28, v6")
    a(f"v_xor_b32 v{XA+1}, 64, v{XA}")
    for st in range(1, NS):
        a(f"v_add_u32 v{XA+2*st}, {st*ST}, v{XA}")
        a(f"v_add_u32 v{XA+2*st+1}, {st*ST}, v{XA+1}")
    a("v_bfe_u32 v5, v0, 2, 2")
    a("v_lshl_add_u32 v6, v3, 3, v5")
    a("v_lshlrev_b32 v6, 7, v6")
    a("v_bfe_u32 v7, v0, 1, 1")
    a("s_lshl_b32 s28, s27, 2")
    a("v_or_b32 v7, s28, v7")
    a("v_lshrrev_b32 v5, 1, v5")
    a("v_lshlrev_b32 v5, 2, v5")
    a("v_xor_b32 v7, v7, v5")
    a("v_and_b32 v5, 1, v3")
    a("v_lshlrev_b32 v5, 1, v5")
    a("v_xor_b32 v7, v7, v5")
    a("v_lshl_add_u32 v6, v7, 4, v6")
    a("v_and_b32 v5, 1, v0")
    a("v_lshl_add_u32 v6, v5, 3, v6")
    a(f"v_add_u32 v{WA}, 16384, v6")
    a(f"v_xor_b32 v{WA+1}, 32, v{WA}")
    for st in range(1, NS):
        a(f"v_add_u32 v{WA+2*st}, {st*ST}, v{WA}")
        a(f"v_add_u32 v{WA+2*st+1}, {st*ST}, v{WA+1}")
    a("v_lshrrev_b32 v5, 1, v3")
    a("v_lshlrev_b32 v5, 10, v5")
    a("v_and_b32 v6, 1, v3")
    a("v_lshl_add_u32 v5, v6, 9, v5")
    a("v_lshl_add_u32 v3, v2, 4, v5")
    a("v_lshl_add_u32 v2, v4, 4, v5")
    for i in range(96):
        a(f"v_mov_b32 v{ACC+i}, 0")
    lg = Tracker(a, "lgkmcnt", 15)
    def xf(sn, x): return F0 + 40 * sn + 4 * x
    def wf(sn, w): return F0 + 40 * sn + 16 + 4 * w
    def reads(sn, st, ks):
        def xr(x): return (f"ds_read_b128 {v(xf(sn,x),4)}, v{XA+2*st+ks} offset:{(x>>1)*4096+(x&1)*1024}", ("x", sn, x))
        def wr(w, h):
            b, ft = w >> 1, w & 1
            return (f"ds_read_b64_tr_b16 {v(wf(sn,w)+2*h,2)}, v{WA+2*st+ft} offset:{b*8192+ks*4096+h*512}", ("w", sn, w))
        r = [xr(0), xr(1), xr(2), xr(3), wr(0, 0), wr(0, 1)]
        for w in range(1, 6): r += [wr(w, 0), wr(w, 1)]
        return r
    def mfma(sn, w, x):
        acc = v(ACC + 4 * (4 * w + x), 4)
        xr_, wr_ = v(xf(sn, x), 4), v(wf(sn, w), 4)
        if w < 4: return f"v_mfma_f32_16x16x32_bf16 {acc}, {wr_}, {xr_}, {acc}"
        return f"v_mfma_f32_16x16x32_bf16 {acc}, {xr_}, {wr_}, {acc}"
    a("s_barrier")
    stamp(a, 0)
    for t, g in reads(0, 0, 0): lg.issue(t, g)
    UN = NS if 16 % NS == 0 else None
    tiles = list(range(16))
    loop = opt("g1loop", 1)
    tcn = [0]
    def tile_code(st, last=False):
        for ks in range(2):
            cur, nxt = ks, ks ^ 1
            if ks == 0: nr = reads(nxt, st, 1)
            else: nr = [] if last else reads(nxt, (st + 1) % NS, 0)
            start = 0 if ks == 0 else opt("g1bar", 4)
            nslots = 24 - start - opt("g1tail", 2)
            slots = sorted(set(start + (i * nslots) // 16 for i in range(16)))
            assert len(slots) == 16
            m = 0
            for w in range(6):
                for x in range(4):
                    if m % 8 == 0:
                        lg.need(*([("x", cur, y) for y in range(4)] + [("w", cur, w), ("w", cur, w + 1)]))
                    if ks == 1 and m == start and not last:
                        lg.drain()
                    a(mfma(cur, w, x))
                    if ks == 1 and m == start and not last:
                        a("s_barrier")
                    if m in slots and nr:
                        t, g = nr.pop(0); lg.issue(t, g)
                    if ks == 0 and m == 23:
                        tcn[0] += 1; prefetch(f"t{tcn[0]}")
                    m += 1
            assert not nr
    nloop = 15 // NS
    a(f"s_mov_b32 s29, {nloop}")
    q0 = list(lg.q)
    a.label("g1_cloop")
    for st in range(NS): tile_code(st)
    assert lg.q == q0, (lg.q, q0)
    a("s_sub_u32 s29, s29, 1")
    a("s_cmp_lg_u32 s29, 0")
    a("s_cbranch_scc1 g1_cloop")
    for kt in range(nloop * NS, 16): tile_code(kt % NS, last=(kt == 15))
    stamp(a, 1)
    a("s_lshl_b32 s31, s24, 2")
    a("s_lshl_b32 s30, s26, 1")
    a("s_add_u32 s37, s30, s31")
    for b in range(3):
        a(f"s_add_u32 s30, s25, {opt('skew', 0)*b}")
        a("s_and_b32 s30, s30, 15")
        a("s_lshl_b32 s30, s30, 1")
        a("s_add_u32 s30, s30, s27")
        if b == 0:
            a("s_lshl_b32 s31, s37, 5")
            a("s_add_u32 s31, s31, s30")
            a("s_lshl_b32 s31, s31, 11")
            a("s_add_u32 s38, s31, 65536")
        else:
            a("s_lshl_b32 s30, s30, 6")
            a("s_add_u32 s30, s30, s37")
            r = 32 + 2 * (b - 1)
            a(f"s_lshl_b32 s{r}, s30, 12")
            a(f"s_add_u32 s{r+1}, s{r}, 4096")
    n = 0
    sf = opt("g1st", "")
    def pack(d, r0, r1):
        a(f"v_cvt_pk_bf16_f32 v{d}, v{r0}, v{r0+1}")
        a(f"v_cvt_pk_bf16_f32 v{d+1}, v{r0+2}, v{r0+3}")
        a(f"v_cvt_pk_bf16_f32 v{d+2}, v{r1}, v{r1+1}")
        a(f"v_cvt_pk_bf16_f32 v{d+3}, v{r1+2}, v{r1+3}")
    for b in range(2):
        for x in range(4):
            d = F0 + 4 * n; n += 1
            pack(d, ACC + 4 * (4 * (2 * b) + x), ACC + 4 * (4 * (2 * b + 1) + x))
            if b == 0:
                a(f"buffer_store_dwordx4 {v(d,4)}, v2, s[16:19], s{38 if x>>1 else 31} offen offset:{(x&1)*128} {sf}")
            else:
                a(f"buffer_store_dwordx4 {v(d,4)}, v2, s[12:15], s{32+(x>>1)} offen offset:{(x&1)*128} {sf}")
    for b2 in range(2):
        for ft in range(2):
            d = F0 + 4 * n; n += 1
            pack(d, ACC + 4 * (4 * (4 + ft) + 2 * b2), ACC + 4 * (4 * (4 + ft) + 2 * b2 + 1))
            a(f"buffer_store_dwordx4 {v(d,4)}, v3, s[12:15], s{34+b2} offen offset:{2048+ft*256} {sf}")

def g1_loader(a, NS):
    ST = G1_ST
    D = NS - 1
    a("s_sub_u32 s26, s3, 4")
    a("v_lshrrev_b32 v2, 3, v0")
    a("v_and_b32 v3, 7, v0")
    a("v_lshrrev_b32 v4, 4, v0")
    a("v_xor_b32 v5, v3, v4")
    a("v_lshlrev_b32 v6, 11, v2")
    a("v_lshl_add_u32 v8, v5, 4, v6")
    a("v_xor_b32 v9, 64, v8")
    a("v_and_b32 v4, 1, v4")
    a("v_lshlrev_b32 v4, 2, v4")
    a("v_xor_b32 v5, v3, v4")
    a("v_mul_u32_u24 v6, 6144, v2")
    a("v_lshl_add_u32 v10, v5, 4, v6")
    a("v_xor_b32 v11, 32, v10")
    a("s_lshl_b32 s27, s24, 7")
    a("s_lshl_b32 s28, s26, 5")
    a("s_add_u32 s27, s27, s28")
    a("s_lshl_b32 s27, s27, 11")
    a("s_lshl_b32 s28, s26, 12")
    a("s_mul_i32 s29, s26, 6")
    a("s_lshl_b32 s30, s29, 10")
    a("s_add_u32 s30, s30, 16384")
    for j in range(6):
        a(f"s_add_u32 s31, s29, {j}")
        a("s_lshr_b32 s32, s31, 3")
        a("s_and_b32 s31, s31, 7")
        a(f"s_mul_i32 s31, s31, {8*6144}")
        a(f"s_mul_i32 s34, s32, {opt('skew', 0)}")
        a("s_add_u32 s34, s34, s25")
        a("s_and_b32 s34, s34, 15")
        a("s_lshl_b32 s34, s34, 7")
        a("s_lshl_b32 s32, s32, 11")
        a("s_add_u32 s31, s31, s32")
        a(f"s_add_u32 s{40+j}, s31, s34")
    a("s_waitcnt lgkmcnt(0)")
    srd(a, 8, "x", 4 * MB)
    srd(a, 12, "wqkv", 6 * MB)
    vm = Tracker(a, "vmcnt", 63)
    rot = opt("rot", 0)
    if rot:
        a(f"s_mul_i32 s46, s25, {opt('rotc', 5)}")
        a(f"s_mul_i32 s47, s24, {opt('rotm', 1)}")
        a("s_add_u32 s46, s46, s47")
        a(f"s_and_b32 s46, s46, {rot-1}")
    def issue(kt):
        slot = kt % NS
        if rot:
            a(f"s_add_u32 s47, s46, {kt % rot}")
            a(f"s_and_b32 s47, s47, {rot-1}")
            a(f"s_add_u32 s47, s47, {kt - kt % rot}")
            a("s_lshl_b32 s37, s47, 7")
            a("s_add_u32 s37, s37, s27")
            a(f"s_mul_i32 s47, s47, {64*6144}")
        for j in range(4):
            a(f"s_add_u32 m0, s28, {slot*ST + j*1024}")
            if rot: a(f"s_add_u32 s33, s37, {j*16384}")
            else: a(f"s_add_u32 s33, s27, {j*16384 + kt*128}")
            vm.issue(f"buffer_load_dwordx4 v{8+(j>>1)}, s[8:11], s33 offen lds", ("t", kt))
        for j in range(6):
            a(f"s_add_u32 m0, s30, {slot*ST + j*1024}")
            if rot: a(f"s_add_u32 s33, s{40+j}, s47")
            else: a(f"s_add_u32 s33, s{40+j}, {kt*64*6144}")
            vm.issue(f"buffer_load_dwordx4 v{10+(j&1)}, s[12:15], s33 offen lds", ("t", kt))
    KR, VR, WR, WF, T, OUT = 16, 38, 54, 62, 78, 108
    nt = opt("prent", "nt")
    def pre_loads():
        srd(a, 16, "k", 4 * MB)
        srd(a, 20, "v", 4 * MB)
        srd(a, 48, "shk", 8192)
        srd(a, 52, "ws", 4 * MB, WS_UT)
        a("s_and_b32 s35, s2, 15")
        a("s_lshr_b32 s36, s2, 4")
        a("s_lshl_b32 s36, s36, 2")
        a("s_add_u32 s36, s36, s26")
        a("s_lshl_b32 s35, s35, 6")
        a("s_lshl_b32 s36, s36, 5")
        a("v_and_b32 v2, 15, v0")
        a("v_lshrrev_b32 v3, 4, v0")
        a("v_lshl_add_u32 v4, v2, 2, s35")
        a("v_lshl_add_u32 v5, v3, 3, s36")
        a("v_lshlrev_b32 v6, 11, v5")
        a("v_lshl_add_u32 v6, v4, 1, v6")
        a("v_lshlrev_b32 v7, 3, v4")
        a("v_lshlrev_b32 v12, 12, v4")
        a("v_lshl_add_u32 v12, v5, 1, v12")
        for j in range(2):
            vm.issue(f"buffer_load_dwordx4 {v(WR+4*j,4)}, v7, s[48:51], 0 offen offset:{16*j}", "pre")
        for r in range(11):
            if r % 2 == 1 or r == 0:
                a(f"v_add_u32 v13, {((r-3)*2048) & 0xffffffff}, v6")
            o = 0 if (r % 2 == 1 or r == 0) else 2048
            vm.issue(f"buffer_load_dwordx2 {v(KR+2*r,2)}, v13, s[16:19], 0 offen offset:{o} {nt}", "pre")
        for r in range(8):
            if r % 2 == 0: a(f"v_add_u32 v13, {r*2048}, v6")
            vm.issue(f"buffer_load_dwordx2 {v(VR+2*r,2)}, v13, s[20:23], 0 offen offset:{(r%2)*2048} {nt}", "pre")
    def pre_chunk(c):
        vm.need("pre")
        dw, hi = c // 2, c % 2
        for j in range(4): unpack(a, WF + j, WR + 2 * c + j // 2, j % 2)
        for r in range(11): unpack(a, T + r, KR + 2 * r + dw, hi)
        for r in range(8): unpack(a, T + 11 + r, VR + 2 * r + dw, hi)
        for r in range(8): a(f"v_mul_f32 v{T+19+r}, v{T+r}, v{WF+3}")
        for j in (2, 1, 0):
            for r in range(8): a(f"v_fmac_f32 v{T+19+r}, v{T+r+3-j}, v{WF+j}")
        for r in range(8): a(f"v_mul_f32 v{T+19+r}, v{T+19+r}, v{T+11+r}")
        for p in range(4): a(f"v_cvt_pk_bf16_f32 v{OUT+4*c+p}, v{T+19+2*p}, v{T+19+2*p+1}")
        a(f"v_add_u32 v13, {c*4096}, v12")
        vm.issue(f"buffer_store_dwordx4 {v(OUT+4*c,4)}, v13, s[52:55], 0 offen {opt('utst','')}", "prest")
    P0 = opt("p0", 13)
    stamp(a, 0)
    for kt in range(2): issue(kt)
    nxt = 2
    for kt in range(16):
        vm.need(("t", kt))
        if kt == 0: stamp(a, 1)
        a("s_barrier")
        lim = min(kt + D, 15)
        cnt = 0
        while nxt <= lim and cnt < 2:
            issue(nxt); nxt += 1; cnt += 1
        if kt == P0: pre_loads()
    if P0 < 16:
        for c in range(4): pre_chunk(c)

def gen_k1():
    NS = opt("ns", 3)
    a = Asm()
    prologue(a, 256, "k1_end")
    g1_decode(a)
    a("s_cmp_ge_u32 s3, 4")
    a("s_cbranch_scc1 k1_loader")
    g1_consumer(a, NS)
    stamp_end(a, 0)
    a("s_endpgm")
    a.label("k1_loader")
    g1_loader(a, NS)
    stamp_end(a, 0)
    a.label("k1_end")
    a("s_endpgm")
    return kernel_text("k1_kernel", a, 256), NS * G1_ST

def attn_setup(a):
    a("v_lshlrev_b32 v2, 4, v0")
    a("v_and_b32 v5, 31, v0")
    a("v_lshrrev_b32 v6, 5, v0")
    a("v_lshlrev_b32 v7, 2, v6")
    a("v_sub_u32 v7, v5, v7")
    for i in range(16):
        a(f"v_cmp_le_i32 s[{40+2*i}:{41+2*i}], {8*(i//4)+i%4}, v7")
    a("v_lshrrev_b32 v7, 4, v5")
    a("v_lshlrev_b32 v7, 10, v7")
    a("v_lshl_add_u32 v7, v6, 8, v7")
    a("v_and_b32 v5, 15, v5")
    a("v_lshl_add_u32 v3, v5, 4, v7")
    C = 0.17677669529663687 * 1.4426950408889634
    cb = struct.unpack("<I", struct.pack("<f", C))[0]
    a(f"s_mov_b32 s36, {hex(cb)}")
    a(f"s_mov_b32 s37, {hex(cb)}")

def attn_unit(a, tag, kvbase):
    Q, KV, S, O, T = 8, 16, 88, 232, 248
    M0 = 40
    pk = opt("pk", 0)
    lg = Tracker(a, "lgkmcnt", 15)
    a("s_lshl_b32 s26, s39, 11")
    a(f"s_add_u32 s26, s26, {kvbase}")
    a("v_add_u32 v4, s26, v2")
    order = [8, 0, 1, 2, 3, 4, 5, 6, 7]
    NB = 9
    def kread(n):
        j = order[n]
        r = KV + 8 * (n % NB)
        lg.issue(f"ds_read_b128 {v(r,4)}, v4 offset:{j*2048}", ("k", j))
        lg.issue(f"ds_read_b128 {v(r+4,4)}, v4 offset:{j*2048+1024}", ("k", j))
    def vread(n):
        j = order[n]
        r = KV + 8 * (n % NB)
        lg.issue(f"ds_read_b128 {v(r,4)}, v4 offset:{32768+j*2048}", ("v", j))
        lg.issue(f"ds_read_b128 {v(r+4,4)}, v4 offset:{32768+j*2048+1024}", ("v", j))
    for n in range(4): kread(n)
    MK = S + 128
    mx = [False, False]
    def maxops(j):
        b = S + 16 * j
        for i in range(0, 16, 2):
            k = (i >> 1) & 1
            if not mx[k]:
                a(f"v_max_f32 v{T+k}, v{b+i}, v{b+i+1}"); mx[k] = True
            else:
                a(f"v_max3_f32 v{T+k}, v{T+k}, v{b+i}, v{b+i+1}")
    def merge():
        for i in range(16):
            a(f"v_cndmask_b32 v{S+i}, v{S+i}, v{S+128+i}, s[{M0+2*i}:{M0+2*i+1}]")
        a("v_mov_b32 v6, 0xffff")
        a("v_mov_b32 v7, 0xffff0000")
        for j in range(8):
            a(f"v_cndmask_b32 v{MK+j}, 0, v6, s[{M0+4*j}:{M0+4*j+1}]")
            a(f"v_cndmask_b32 v{MK+8+j}, 0, v7, s[{M0+4*j+2}:{M0+4*j+3}]")
        for j in range(8):
            a(f"v_or_b32 v{MK+j}, v{MK+j}, v{MK+8+j}")
    ool = []
    for n, j in enumerate(order):
        lg.need(("k", j))
        acc = v(S + 16 * j, 16)
        r = KV + 8 * (n % NB)
        if j < 8:
            a(f"s_cmp_lt_u32 s25, {8-j}")
            a(f"s_cbranch_scc1 {tag}_inv{j}")
        a(f"v_mfma_f32_32x32x16_bf16 {acc}, {v(r,4)}, {v(Q,4)}, 0")
        a(f"v_mfma_f32_32x32x16_bf16 {acc}, {v(r+4,4)}, {v(Q+4,4)}, {acc}")
        if j < 8:
            a.label(f"{tag}_back{j}")
            ool.append(j)
        if n + 4 < 9: kread(n + 4)
        if n == 3: merge(); maxops(0)
        if n >= 4: maxops(order[n - 2])
    maxops(6); maxops(7)
    a(f"v_max_f32 v{T}, v{T}, v{T+1}")
    a(f"v_mov_b32 v{T+1}, v{T}")
    a(f"v_permlane32_swap_b32 v{T}, v{T+1}")
    a(f"v_max_f32 v{T}, v{T}, v{T+1}")
    a(f"v_mul_f32 v{T}, s36, v{T}")
    a(f"v_mov_b32 v{T+1}, v{T}")
    for k in range(4): a(f"v_mov_b32 v{T+2+k}, 0")
    a("s_cmp_lg_u32 s38, 0")
    a(f"s_cbranch_scc1 {tag}_vsk")
    a("s_waitcnt vmcnt(0)")
    lds_signal(a, FLAG_V)
    a.label(f"{tag}_vsk")
    lds_wait(a, tag + "_vw", FLAG_V, 4)
    for n in range(3): vread(n)
    nv = [3]
    oacc = v(O, 16)
    first = [True]
    def pv(j, pb):
        lg.need(("v", j))
        r = KV + 8 * (order.index(j) % NB)
        for t in range(2):
            a(f"v_mfma_f32_32x32x16_bf16 {oacc}, {v(r+4*t,4)}, {v(pb+4*t,4)}, {'0' if first[0] else oacc}")
            first[0] = False
        if nv[0] < 9: vread(nv[0]); nv[0] += 1
    pend = None
    for j in range(8):
        b = S + 16 * j
        if pk:
            for i in range(0, 16, 2):
                a(f"v_pk_fma_f32 {v(b+i,2)}, {v(b+i,2)}, s[36:37], {v(T,2)} neg_lo:[0,0,1] neg_hi:[0,0,1]")
        else:
            for i in range(16):
                a(f"v_fma_f32 v{b+i}, v{b+i}, s36, -v{T}")
        if pend:
            for x in pend: pv(*x)
            pend = None
        for i in range(16):
            a(f"v_exp_f32 v{b+i}, v{b+i}")
        if pk:
            for i in range(0, 16, 2):
                k = T + 2 + (i & 2)
                a(f"v_pk_add_f32 {v(k,2)}, {v(k,2)}, {v(b+i,2)}")
        else:
            for i in range(16):
                a(f"v_add_f32 v{T+2+(i&3)}, v{T+2+(i&3)}, v{b+i}")
        for i in range(8):
            a(f"v_cvt_pk_bf16_f32 v{b+i}, v{b+2*i}, v{b+2*i+1}")
        if j == 0:
            for i in range(8):
                a(f"v_and_b32 v{S+8+i}, v{MK+i}, v{S+i}")
                a(f"v_bfi_b32 v{S+i}, v{MK+i}, 0, v{S+i}")
            pend = [(8, S + 8), (0, S)]
        else:
            pend = [(j, b)]
    a(f"v_add_f32 v{T+2}, v{T+2}, v{T+3}")
    a(f"v_add_f32 v{T+4}, v{T+4}, v{T+5}")
    for x in pend: pv(*x)
    a(f"v_add_f32 v{T+2}, v{T+2}, v{T+4}")
    a(f"v_mov_b32 v{T+3}, v{T+2}")
    a(f"v_permlane32_swap_b32 v{T+2}, v{T+3}")
    a(f"v_add_f32 v{T+2}, v{T+2}, v{T+3}")
    a(f"v_rcp_f32 v{T+2}, v{T+2}")
    a("s_lshl_b32 s27, s25, 5")
    a("s_add_u32 s27, s27, s24")
    a("s_lshl_b32 s27, s27, 11")
    for i in range(16):
        a(f"v_mul_f32 v{O+i}, v{O+i}, v{T+2}")
    for i in range(8):
        a(f"v_cvt_pk_bf16_f32 v{S+i}, v{O+2*i}, v{O+2*i+1}")
    sf = opt("ost", "")
    a(f"buffer_store_dwordx4 {v(S,4)}, v3, s[16:19], s27 offen {sf}")
    a(f"buffer_store_dwordx4 {v(S+4,4)}, v3, s[16:19], s27 offen offset:512 {sf}")
    def out_of_line():
        for j in ool:
            a.label(f"{tag}_inv{j}")
            for i in range(16):
                a(f"v_mov_b32 v{S+16*j+i}, 0xf149f2ca")
            a(f"s_branch {tag}_back{j}")
    return out_of_line

FLAG_K, FLAG_V = 0, 4
def lds_signal(a, off):
    a("v_mov_b32 v5, 0")
    a("v_mov_b32 v6, 1")
    a("s_mov_b64 exec, 1")
    a(f"ds_add_u32 v5, v6 offset:{off}")
    a("s_mov_b64 exec, -1")
def lds_wait(a, tag, off, n):
    a("v_mov_b32 v5, 0")
    a.label(tag)
    a(f"ds_read_b32 v6, v5 offset:{off}")
    a("s_waitcnt lgkmcnt(0)")
    a("v_readfirstlane_b32 s27, v6")
    a(f"s_cmp_ge_u32 s27, {n}")
    a(f"s_cbranch_scc1 {tag}_ok")
    a("s_sleep 1")
    a(f"s_branch {tag}")
    a.label(tag + "_ok")

CONV_LDS = 8704
def conv_wave(a, ldsbase_s, ch_s, barrier=False):
    UB, HB = 256, 4416
    srd(a, 8, "ssmk", 4 * MB)
    srd(a, 12, "ws", 4 * MB, WS_UT)
    srd(a, 16, "ws", 4 * MB, WS_YT)
    srd(a, 20, "ssmD", 2048)
    L = ldsbase_s
    a("v_lshlrev_b32 v2, 4, v0")
    a(f"s_lshl_b32 s26, s{ch_s}, 12")
    a(f"s_add_u32 m0, s{L}, {HB}")
    for j in range(4):
        a(f"buffer_load_dwordx4 v2, s[8:11], s26 offen offset:{j*1024} {opt('hnt','nt')} lds")
    a(f"s_add_u32 m0, s{L}, {UB}")
    for j in range(4):
        a(f"buffer_load_dwordx4 v2, s[12:15], s26 offen offset:{j*1024} lds")
    a(f"s_lshl_b32 s27, s{ch_s}, 1")
    a("v_mov_b32 v3, s27")
    a("v_mov_b32 v4, s26")
    a("buffer_load_ushort v12, v3, s[20:23], 0 offen")
    a("buffer_load_ushort v13, v4, s[8:11], 0 offen")
    if barrier: a("s_barrier")
    a("v_mov_b32 v4, 0")
    a(f"v_lshl_add_u32 v3, v0, 2, s{L}")
    a("ds_write_b32 v3, v4")
    a("v_and_b32 v5, 15, v0")
    a(f"v_lshl_add_u32 v5, v5, 2, s{L}")
    a(f"ds_write_b32 v5, v4 offset:{UB+4096}")
    a("v_lshrrev_b32 v4, 4, v0")
    a("v_bfe_u32 v5, v0, 2, 2")
    a("v_and_b32 v6, 3, v0")
    a("v_lshlrev_b32 v7, 2, v6")
    a("v_sub_u32 v7, v7, v5")
    a("v_lshlrev_b32 v8, 3, v4")
    a("v_sub_u32 v7, v7, v8")
    a("v_lshlrev_b32 v7, 3, v7")
    a(f"v_add_u32 v7, {UB+24-32}, v7")
    a(f"v_add_u32 v10, s{L}, v7")
    a("v_add3_u32 v7, v8, v5, v6")
    a("v_lshlrev_b32 v7, 3, v7")
    a(f"v_add_u32 v7, {HB-24}, v7")
    a(f"v_add_u32 v11, s{L}, v7")
    a("v_cmp_eq_u32 s[28:29], 63, v0")
    a(f"v_mov_b32 v3, s{L}")
    a("v_mov_b32 v14, 0")
    B0, A0, ACC, E = 16, 80, 96, 224
    a("s_waitcnt vmcnt(0)")
    stamp(a, 0)
    a("v_lshlrev_b32 v12, 16, v12")
    a("v_lshlrev_b32 v13, 16, v13")
    a("v_add_f32 v12, v12, v13")
    a("v_cvt_pk_bf16_f32 v12, v12, v12")
    lg = Tracker(a, "lgkmcnt", 15)
    lg.issue(f"ds_write_b16 v3, v12 offset:{HB}", "misc")
    def aread(d):
        r = A0 + 4 * (d % 4)
        lg.issue(f"ds_read_b64_tr_b16 {v(r,2)}, v10 offset:{128*d+32}", ("a", d))
        lg.issue(f"ds_read_b64_tr_b16 {v(r+2,2)}, v10 offset:{128*d}", ("a", d))
    def bread(sN):
        lg.issue(f"ds_read_b64_tr_b16 {v(B0+4*sN,2)}, v11 offset:{256*sN}", ("b", sN))
        lg.issue(f"ds_read_b64_tr_b16 {v(B0+4*sN+2,2)}, v11 offset:{256*sN+32}", ("b", sN))
    aread(0)
    for sN in range(5): bread(sN)
    nb = 5
    started = set()
    def epi(T):
        r = ACC + 4 * T; p = ACC + 4 * (T - 1)
        e = E + 3 * (T % 2)
        ops = []
        for lvl, x in enumerate((3, 2, 1)):
            prev = f"v{p+x}" if T > 0 else "v14"
            ops.append(f"v_cndmask_b32 v{e+lvl}, v{r+x}, {prev}, s[28:29]")
            ops.append(f"v_add_f32_dpp v{r+x-1}, v{e+lvl}, v{r+x-1} wave_ror:1 row_mask:0xf bank_mask:0xf")
        return ops
    pending = []
    for d in range(32):
        n = (31 - d) // 2 + 1
        if d >= 3: pending += epi(d - 3)
        for sN in range(n):
            T = d + 2 * sN
            lg.need(("a", d), ("b", sN))
            acc = v(ACC + 4 * T, 4)
            c = acc if T in started else "0"
            started.add(T)
            a(f"v_mfma_f32_16x16x32_bf16 {acc}, {v(A0+4*(d%4),4)}, {v(B0+4*sN,4)}, {c}")
            if d == 0 and nb < 16: bread(nb); nb += 1
            if d == 0 and sN in (11, 13): aread(1 if sN == 11 else 2)
            if d >= 0 and sN == (14 if d == 0 else 0) and d + 3 < 32: aread(d + 3)
            if pending and sN % 2 == 1: a(pending.pop(0))
            if pending and d >= 20: a(pending.pop(0))
    for T in range(29, 32): pending += epi(T)
    for x in pending: a(x)
    stamp(a, 1)
    for c in range(4):
        for p in range(4):
            T = 8 * c + 2 * p
            a(f"v_cvt_pk_bf16_f32 v{B0+4*c+p}, v{ACC+4*T}, v{ACC+4*T+4}")
        a(f"buffer_store_dwordx4 {v(B0+4*c,4)}, v2, s[16:19], s26 offen offset:{1024*c} {opt('ytst','')}")

def gen_k2():
    a = Asm()
    KVB = 1024
    CVB = KVB + 65536
    prologue(a, 256, "k2_end")
    a("s_cmp_ge_u32 s3, 4")
    a("s_cbranch_scc1 k2_conv")
    a("s_and_b32 s22, s2, 7")
    a("s_lshr_b32 s23, s2, 3")
    a("s_lshl_b32 s24, s22, 2")
    a("s_lshr_b32 s25, s23, 3")
    a("s_add_u32 s24, s24, s25")
    a("s_and_b32 s25, s23, 7")
    a("s_lshl_b32 s25, s25, 3")
    a("v_lshlrev_b32 v2, 4, v0")
    a("s_lshl_b32 s26, s24, 6")
    a("s_add_u32 s26, s26, s25")
    a("s_lshl_b32 s27, s3, 2")
    a("s_add_u32 s27, s27, s26")
    a("s_lshl_b32 s27, s27, 12")
    a(f"s_sub_u32 s27, s27, {8*4096}")
    a("v_add_u32 v4, s27, v2")
    a("s_lshl_b32 s28, s3, 13")
    a("s_add_u32 s25, s25, s3")
    a("s_mov_b32 s39, s3")
    a("v_mov_b32 v5, 0")
    a("v_mov_b32 v6, 0")
    a("v_mov_b32 v7, 0")
    a("ds_write_b64 v5, v[6:7]")
    a("s_waitcnt lgkmcnt(0)")
    srd(a, 8, "ws", 4 * MB, WS_Q)
    if REUSE: srd(a, 12, "out", 8 * MB)
    else: srd(a, 12, "ws", 8 * MB, WS_KV)
    srd(a, 16, "ws", 4 * MB, WS_O)
    vm = Tracker(a, "vmcnt", 63)
    for part in range(2):
        for i in range(4):
            a(f"v_add_u32 v5, {i*4096 + part*2048}, v4")
            a(f"s_add_u32 m0, s28, {KVB + part*32768 + i*2048}")
            vm.issue("buffer_load_dwordx4 v5, s[12:15], 0 offen lds", part)
            vm.issue("buffer_load_dwordx4 v5, s[12:15], 0 offen offset:1024 lds", part)
        if part == 0:
            a("s_lshl_b32 s26, s25, 5")
            a("s_add_u32 s26, s26, s24")
            a("s_lshl_b32 s27, s26, 11")
            vm.issue("buffer_load_dwordx4 v[8:11], v2, s[8:11], s27 offen", "q")
            vm.issue("buffer_load_dwordx4 v[12:15], v2, s[8:11], s27 offen offset:1024", "q")
            a("s_barrier")
    attn_setup(a)
    vm.need(0, "q")
    lds_signal(a, FLAG_K)
    lds_wait(a, "k2_kw", FLAG_K, 4)
    stamp(a, 0)
    a("s_mov_b32 s38, 0")
    a.label("k2_aloop")
    ool = attn_unit(a, "at", KVB)
    a("s_add_u32 s25, s25, 4")
    a("s_add_u32 s39, s39, 4")
    a("s_add_u32 s38, s38, 1")
    a("s_cmp_lt_u32 s38, 2")
    a("s_cbranch_scc0 k2_adone")
    a("s_lshl_b32 s26, s25, 5")
    a("s_add_u32 s26, s26, s24")
    a("s_lshl_b32 s27, s26, 11")
    a("buffer_load_dwordx4 v[8:11], v2, s[8:11], s27 offen")
    a("buffer_load_dwordx4 v[12:15], v2, s[8:11], s27 offen offset:1024")
    a("s_waitcnt vmcnt(0)")
    a("s_branch k2_aloop")
    a.label("k2_adone")
    stamp_end(a, 1)
    a("s_endpgm")
    ool()
    a.label("k2_conv")
    a("s_sub_u32 s24, s3, 4")
    a(f"s_mul_i32 s25, s24, {CONV_LDS}")
    a(f"s_add_u32 s25, s25, {CVB}")
    a("s_lshl_b32 s30, s2, 2")
    a("s_add_u32 s24, s24, s30")
    a("s_waitcnt lgkmcnt(0)")
    conv_wave(a, 25, 24, barrier=True)
    stamp_end(a, 1)
    a.label("k2_end")
    a("s_endpgm")
    return kernel_text("k2_kernel", a, 256), CVB + 4 * CONV_LDS

def post_block(a, vm, blk_s, regs):
    QR, YR, T, OUT = regs
    a(f"s_and_b32 s28, s{blk_s}, 15")
    a(f"s_lshr_b32 s29, s{blk_s}, 4")
    a("s_and_b32 s30, s29, 7")
    a("s_lshr_b32 s29, s29, 3")
    a("v_and_b32 v4, 15, v0")
    a("v_lshrrev_b32 v5, 4, v0")
    a("s_lshl_b32 s29, s29, 6")
    a("v_lshl_add_u32 v4, v4, 2, s29")
    a("s_lshl_b32 s28, s28, 2")
    a("v_add_u32 v5, s28, v5")
    a("s_lshr_b32 s31, s30, 1")
    a("s_lshl_b32 s31, s31, 10")
    a("s_and_b32 s32, s30, 1")
    a("s_lshl_b32 s32, s32, 3")
    a("s_add_u32 s31, s31, s32")
    a("v_lshlrev_b32 v6, 12, v4")
    a("v_lshl_add_u32 v6, v5, 4, v6")
    a("v_add_u32 v6, s31, v6")
    a("s_lshl_b32 s31, s30, 8")
    a("v_add_u32 v5, s31, v5")
    a("v_lshlrev_b32 v7, 11, v5")
    a("v_lshl_add_u32 v7, v4, 1, v7")
    a(f"v_lshlrev_b32 v{OUT+8}, 12, v5")
    a(f"v_lshl_add_u32 v{OUT+8}, v4, 1, v{OUT+8}")
    for j in range(4):
        a(f"s_mov_b32 s31, {j*64*2048}")
        vm.issue(f"buffer_load_dwordx2 {v(QR+2*j,2)}, v7, s[20:23], s31 offen {opt('qnt','nt')}", "post")
    for c in range(4):
        a(f"s_mov_b32 s31, {c*4096}")
        vm.issue(f"buffer_load_dwordx2 {v(YR+2*c,2)}, v6, s[48:51], s31 offen", "post")
    def fin():
        vm.need("post")
        for j in range(4):
            for c in range(4):
                unpack(a, T + c, QR + 2 * j + c // 2, c % 2)
                unpack(a, T + 4 + c, YR + 2 * c + j // 2, j % 2)
            for c in range(4): a(f"v_mul_f32 v{T+c}, v{T+c}, v{T+4+c}")
            for p in range(2): a(f"v_cvt_pk_bf16_f32 v{OUT+2*j+p}, v{T+2*p}, v{T+2*p+1}")
            a(f"s_mov_b32 s31, {j*64*4096}")
            vm.issue(f"buffer_store_dwordx2 {v(OUT+2*j,2)}, v{OUT+8}, s[16:19], s31 offen {opt('outst','')}", "postst")
    return fin

def gen_k3():
    a = Asm()
    prologue(a, 256, "k3_end")
    a("s_and_b32 s22, s2, 7")
    a("s_lshr_b32 s23, s2, 3")
    a("s_and_b32 s24, s22, 3")
    a("s_lshl_b32 s24, s24, 2")
    a("s_and_b32 s25, s23, 3")
    a("s_add_u32 s24, s24, s25")
    a("s_lshr_b32 s25, s22, 2")
    a("s_lshl_b32 s25, s25, 3")
    a("s_lshr_b32 s26, s23, 2")
    a("s_add_u32 s25, s25, s26")
    a("s_and_b32 s26, s3, 3")
    a("s_lshr_b32 s27, s3, 2")
    a("v_lshrrev_b32 v2, 3, v0")
    a("v_and_b32 v3, 7, v0")
    a("v_bfe_u32 v4, v0, 4, 1")
    a("v_lshlrev_b32 v4, 2, v4")
    a("v_xor_b32 v3, v3, v4")
    a("v_bfe_u32 v4, v0, 5, 1")
    a("v_lshlrev_b32 v4, 1, v4")
    a("v_xor_b32 v3, v3, v4")
    a("v_lshlrev_b32 v2, 11, v2")
    a("v_lshl_add_u32 v8, v3, 4, v2")
    a("v_lshlrev_b32 v9, 4, v0")
    a("s_lshl_b32 s33, s27, 4")
    a("s_add_u32 s33, s33, s26")
    a("s_lshl_b32 s34, s33, 12")
    a("s_lshl_b32 s33, s33, 16")
    a("s_lshl_b32 s35, s25, 7")
    a("s_add_u32 s33, s33, s35")
    a("s_lshl_b32 s35, s24, 2")
    a("s_add_u32 s35, s35, s26")
    a("s_lshl_b32 s35, s35, 16")
    a("s_lshl_b32 s36, s27, 15")
    a("s_add_u32 s35, s35, s36")
    a("s_waitcnt lgkmcnt(0)")
    srd(a, 8, "ws", 4 * MB, WS_O)
    srd(a, 12, "wo", 2 * MB)
    srd(a, 16, "out", 8 * MB)
    srd(a, 20, "q", 4 * MB)
    srd(a, 48, "ws", 4 * MB, WS_YT)
    vm = Tracker(a, "vmcnt", 63)
    lg = Tracker(a, "lgkmcnt", 15)
    WA, WFR, ACC, OF = 10, 16, 48, 80
    NOF = opt("nof", 12)
    def wdma(c):
        for j in range(4):
            a(f"s_add_u32 m0, s34, {c*16384 + j*1024}")
            a(f"s_add_u32 s37, s33, {c*4*65536 + j*16384}")
            vm.issue("buffer_load_dwordx4 v8, s[12:15], s37 offen lds", ("w", c))
    def oload(h):
        r = OF + 8 * (h % NOF)
        a(f"s_add_u32 s38, s35, {h*2048}")
        o = 0
        vm.issue(f"buffer_load_dwordx4 {v(r,4)}, v9, s[8:11], s38 offen offset:{o}", ("o", h))
        vm.issue(f"buffer_load_dwordx4 {v(r+4,4)}, v9, s[8:11], s38 offen offset:{o+1024}", ("o", h))
    LA = opt("ola", 5)
    wdma(0)
    for h in range(LA): oload(h)
    a("v_lshrrev_b32 v2, 4, v0")
    a("v_lshrrev_b32 v3, 1, v2")
    a("v_and_b32 v2, 1, v2")
    a("v_bfe_u32 v4, v0, 2, 2")
    a("v_lshlrev_b32 v5, 4, v3")
    a("v_lshl_add_u32 v5, v2, 2, v5")
    a("v_add_u32 v5, v5, v4")
    a("v_lshlrev_b32 v5, 7, v5")
    a("v_bfe_u32 v6, v0, 1, 1")
    a("v_lshrrev_b32 v4, 1, v4")
    a("v_lshl_add_u32 v6, v4, 2, v6")
    a("v_lshl_add_u32 v6, v2, 1, v6")
    a("v_lshl_add_u32 v5, v6, 4, v5")
    a("v_and_b32 v6, 1, v0")
    a("v_lshl_add_u32 v5, v6, 3, v5")
    a("s_lshl_b32 s36, s27, 16")
    a(f"v_add_u32 v{WA}, s36, v5")
    for n in range(1, 4): a(f"v_xor_b32 v{WA+n}, {32*n}, v{WA}")
    a("s_lshl_b32 s39, s2, 3")
    a("s_add_u32 s39, s39, s3")
    def wreads(h):
        sn = h & 1
        r = []
        for n in range(4):
            for x in range(2):
                r.append((f"ds_read_b64_tr_b16 {v(WFR+16*sn+4*n+2*x,2)}, v{WA+n} offset:{h*4096+x*1024}", ("w", h, n)))
        return r
    started = False
    for h in range(16):
        if h % 4 == 0:
            vm.need(("w", h // 4))
            a("s_barrier")
            if h == 0: stamp(a, 0)
            for t, g in wreads(h): lg.issue(t, g)
        nr = wreads(h + 1) if (h + 1) % 4 != 0 else []
        vm.need(("o", h))
        for n in range(4):
            for u in range(2):
                lg.need(("w", h, n))
                acc = v(ACC + 4 * (4 * u + n), 4)
                a(f"v_mfma_f32_16x16x32_bf16 {acc}, {v(WFR+16*(h&1)+4*n,4)}, {v(OF+8*(h%NOF)+4*u,4)}, {acc if started else '0'}")
                if nr:
                    t, g = nr.pop(0); lg.issue(t, g)
        started = True
        if h % 4 == 0 and h // 4 + 1 < 4: wdma(h // 4 + 1)
        if h + LA < 16: oload(h + LA)
        if h == opt("postl", 11):
            fin = post_block(a, vm, 39, (OF + 8 * NOF, OF + 8 * NOF + 8, OF + 8 * NOF + 16, OF + 8 * NOF + 24))
    fin()
    stamp(a, 1)
    RS = 272
    a("v_and_b32 v2, 15, v0")
    a("v_lshrrev_b32 v3, 4, v0")
    a("s_lshl_b32 s36, s26, 5")
    a("s_lshl_b32 s37, s27, 7")
    a("s_add_u32 s36, s36, s37")
    a("v_add_u32 v2, s36, v2")
    a(f"v_mul_u32_u24 v2, {RS}, v2")
    a("v_lshl_add_u32 v2, v3, 4, v2")
    a("s_barrier")
    for u in range(2):
        for n in range(4):
            a(f"ds_write_b128 v2, {v(ACC+4*(4*u+n),4)} offset:{u*16*RS+n*64}")
    a("v_lshrrev_b32 v3, 3, v0")
    a("s_lshl_b32 s36, s3, 4")
    a("v_add_u32 v3, s36, v3")
    a("v_and_b32 v4, 7, v0")
    a(f"v_mul_u32_u24 v5, {RS}, v3")
    a("v_lshl_add_u32 v5, v4, 5, v5")
    a("s_lshl_b32 s36, s24, 7")
    a("v_add_u32 v3, s36, v3")
    a("v_lshlrev_b32 v3, 12, v3")
    a("v_lshl_add_u32 v3, v4, 4, v3")
    a("s_lshl_b32 s36, s25, 7")
    a("s_add_u32 s36, s36, 2048")
    a(f"s_add_u32 s37, s36, {8*4096}")
    a("s_waitcnt lgkmcnt(0)")
    a("s_barrier")
    for it in range(2):
        for kh in range(2):
            for x in range(2):
                a(f"ds_read_b128 {v(16+16*it+8*kh+4*x,4)}, v5 offset:{it*8*RS+kh*128*RS+16*x}")
    for it in range(2):
        a(f"s_waitcnt lgkmcnt({4*(1-it)})")
        b = 16 + 16 * it
        for e in range(8): a(f"v_add_f32 v{b+e}, v{b+e}, v{b+8+e}")
        for p in range(4): a(f"v_cvt_pk_bf16_f32 v{48+4*it+p}, v{b+2*p}, v{b+2*p+1}")
        a(f"buffer_store_dwordx4 {v(48+4*it,4)}, v3, s[16:19], s{36+it} offen {opt('outst','')}")
    stamp_end(a, 2)
    a.label("k3_end")
    a("s_endpgm")
    return kernel_text("k3_kernel", a, 256), 131072

HEADER = open("concat_heads__ssm_conv_h3__sliding_block__prompt.s.ref").read().split("; Override")[0]

def emit(launches, kernels, path):
    out = HEADER
    for (k, g, b, l) in launches:
        out += f"; @launch kernel={k} grid=({g},1,1) block=({b},1,1) lds={l}\n"
    out += '.amdgcn_target "amdgcn-amd-amdhsa--gfx950"\n.text\n'
    for c, _ in kernels: out += c
    out += '.section .rodata,"a"\n'
    for _, kd in kernels: out += ".p2align 6\n" + kd
    open(path, "w").write(out)

if __name__ == "__main__":
    DIAG = "--diag" in sys.argv
    for x in sys.argv[2:]:
        if "=" in x:
            k_, v_ = x.split("=")
            OPT[k_] = int(v_) if v_.isdigit() else v_.replace("+", " ").replace("none", "")
    REUSE = opt("reuse", 1) == 1
    if REUSE: WS_O, WS_UT, WS_YT = WS_Q, 4 * MB, 4 * MB
    k1, l1 = gen_k1(); k2, l2 = gen_k2(); k3, l3 = gen_k3()
    emit([("k1_kernel", 256, 512, l1), ("k2_kernel", 256, 512, l2), ("k3_kernel", 256, 512, l3)], [k1, k2, k3], sys.argv[1])
```

```python
import sys, struct
from asmdsl import *

MB = 1 << 20
WS_Q, WS_KV, WS_O, WS_UT, WS_YT, WS_FL = 0, 4 * MB, 12 * MB, 16 * MB, 20 * MB, 24 * MB
FL_PRE, FL_G1, FL_CONV, FL_ATT = 0, 1024, 2048, 3072
P = dict(q=76, k=78, v=80, shk=82, ssmk=84, ssmD=86, x=88, wqkv=90, wo=92, out=94, dbg=96, ws=98)
DIAG = False
OPT = {}
def opt(k, d): return OPT.get(k, d)
def fbits(x): return struct.unpack("<I", struct.pack("<f", x))[0]

L_CTL = 0
C_PRE, C_G1, C_CONV, C_ATT, C_K, C_V, C_G1OK, C_MODE = 0, 4, 8, 12, 16, 20, 24, 28
G1_BASE, G1_ST, NS = 1024, 40960, 3
CONV_LDS = 8704
CV_BASE = G1_BASE + NS * G1_ST
KV_BASE = 1024
W_BASE = 32768
LDS_TOTAL = 163840
ST = "sc1"

def srd(a, d, name, nbytes, add=0):
    lo, hi = P[name], P[name] + 1
    if add:
        a(f"s_add_u32 s{d}, s{lo}, {hex(add)}")
        a(f"s_addc_u32 s{d+1}, s{hi}, 0")
    else:
        a(f"s_mov_b32 s{d}, s{lo}")
        a(f"s_mov_b32 s{d+1}, s{hi}")
    a(f"s_mov_b32 s{d+2}, {hex(nbytes)}")
    a(f"s_mov_b32 s{d+3}, 0x00020000")

def unpack(dst, src, hi):
    return f"v_and_b32 v{dst}, 0xffff0000, v{src}" if hi else f"v_lshlrev_b32 v{dst}, 16, v{src}"

NSTAMP = [0]
def stamp(a, n):
    if not DIAG: return
    a("s_memrealtime s[4:5]")
    a("s_memtime s[100:101]")
    a("s_waitcnt lgkmcnt(0)")
    a(f"v_writelane_b32 v255, s4, {n}")
    a(f"v_writelane_b32 v255, s100, {32+n}")
def stamp_flush(a):
    if not DIAG: return
    a("s_waitcnt vmcnt(0)")
    stamp(a, 15)
    srd(a, 8, "ws", MB, 64 * MB)
    a("s_lshl_b32 s28, s2, 3")
    a("s_add_u32 s28, s28, s3")
    a("s_lshl_b32 s28, s28, 8")
    a("v_lshlrev_b32 v1, 2, v0")
    a("buffer_store_dword v255, v1, s[8:11], s28 offen")

def sync_srds(a):
    srd(a, 68, "ws", 4096, WS_FL)
    srd(a, 72, "dbg", 256)
UID = [0]
def uid(p):
    UID[0] += 1
    return f"{p}{UID[0]}"
SPIN = 1 << 17
def go_issue(a, vreg, vz):
    a(f"v_mov_b32 v{vz}, 0")
    return f"buffer_load_dword v{vreg}, v{vz}, s[72:75], 0 offen sc1"
def go_check(a, vreg, vz):
    t = uid("go")
    a(f"s_mov_b32 s6, {SPIN}")
    a.label(t)
    a(f"v_readfirstlane_b32 s7, v{vreg}")
    a("s_cmp_lg_u32 s7, 0")
    a(f"s_cbranch_scc1 {t}_ok")
    a("s_sub_u32 s6, s6, 1")
    a("s_cmp_eq_u32 s6, 0")
    a(f"s_cbranch_scc1 {t}_ok")
    a("s_sleep 2")
    a(f"v_mov_b32 v{vz}, 0")
    a(f"buffer_load_dword v{vreg}, v{vz}, s[72:75], 0 offen sc1")
    a("s_waitcnt vmcnt(0)")
    a(f"s_branch {t}")
    a.label(t + "_ok")
def signal(a, ctr, nwaves, flag_s, va, vb, val_s=None, fl="sc1"):
    t = uid("sig")
    a(f"v_mov_b32 v{va}, 0")
    a(f"v_mov_b32 v{vb}, 1")
    a("s_mov_b64 exec, 1")
    a(f"ds_add_rtn_u32 v{va}, v{va}, v{vb} offset:{ctr}")
    a("s_waitcnt lgkmcnt(0)")
    a(f"v_readfirstlane_b32 s7, v{va}")
    a(f"s_cmp_lg_u32 s7, {nwaves-1}")
    a(f"s_cbranch_scc1 {t}")
    a(f"v_mov_b32 v{va}, s{flag_s}")
    if val_s is not None: a(f"v_mov_b32 v{vb}, s{val_s}")
    a(f"buffer_store_dword v{vb}, v{va}, s[68:71], 0 offen {fl}")
    a.label(t)
    a("s_mov_b64 exec, -1")
def poll(a, vaddr, vt):
    t = uid("poll")
    a(f"s_mov_b32 s6, {SPIN}")
    a.label(t)
    a(f"buffer_load_dword v{vt}, v{vaddr}, s[68:71], 0 offen sc1")
    a("s_waitcnt vmcnt(0)")
    a(f"v_cmp_eq_u32 vcc, 0, v{vt}")
    a("s_cmp_eq_u64 vcc, 0")
    a(f"s_cbranch_scc1 {t}_ok")
    a("s_sub_u32 s6, s6, 1")
    a("s_cmp_eq_u32 s6, 0")
    a(f"s_cbranch_scc1 {t}_ok")
    a(f"s_sleep {opt('psleep', 2)}")
    a(f"s_branch {t}")
    a.label(t + "_ok")
def lds_add(a, off, va, vb):
    a(f"v_mov_b32 v{va}, 0")
    a(f"v_mov_b32 v{vb}, 1")
    a("s_mov_b64 exec, 1")
    a(f"ds_add_u32 v{va}, v{vb} offset:{off}")
    a("s_mov_b64 exec, -1")
def lds_wait(a, off, n, va, vb):
    t = uid("lw")
    a(f"v_mov_b32 v{va}, 0")
    a(f"s_mov_b32 s6, {SPIN*8}")
    a.label(t)
    a(f"ds_read_b32 v{vb}, v{va} offset:{off}")
    a("s_waitcnt lgkmcnt(0)")
    a(f"v_readfirstlane_b32 s7, v{vb}")
    a(f"s_cmp_ge_u32 s7, {n}")
    a(f"s_cbranch_scc1 {t}_ok")
    a("s_sub_u32 s6, s6, 1")
    a("s_cmp_eq_u32 s6, 0")
    a(f"s_cbranch_scc1 {t}_ok")
    a("s_sleep 1")
    a(f"s_branch {t}")
    a.label(t + "_ok")

SKEW = 5
def hp_of(a, dst, b_s=None, b=None):
    if opt("xl", 1):
        if b is not None: a(f"s_xor_b32 s{dst}, s25, {b & 1}")
        else:
            a(f"s_and_b32 s{dst}, s{b_s}, 1")
            a(f"s_xor_b32 s{dst}, s{dst}, s25")
    else:
        if b is not None: a(f"s_add_u32 s{dst}, s25, {SKEW*b}")
        else:
            a(f"s_mul_i32 s{dst}, s{b_s}, {SKEW}")
            a(f"s_add_u32 s{dst}, s{dst}, s25")
        a(f"s_and_b32 s{dst}, s{dst}, 15")
def g1_decode(a):
    a("s_and_b32 s22, s2, 7")
    a("s_lshr_b32 s23, s2, 3")
    if opt("xl", 1):
        a("s_lshr_b32 s24, s23, 1")
        a("s_and_b32 s25, s23, 1")
        a("s_lshl_b32 s26, s22, 1")
        a("s_add_u32 s25, s25, s26")
        return
    a("s_and_b32 s24, s22, 1")
    a("s_lshl_b32 s24, s24, 3")
    a("s_and_b32 s25, s23, 7")
    a("s_add_u32 s24, s24, s25")
    a("s_lshr_b32 s25, s22, 1")
    a("s_lshl_b32 s25, s25, 2")
    a("s_lshr_b32 s26, s23, 3")
    a("s_add_u32 s25, s25, s26")

def g1_consumer(a):
    XA, WA, F0, ACC = 8, 14, 24, 104
    KR, VR, WR = 200, 222, 238
    KW, AC, VT, GO = 246, 250, 252, 253
    WF, OUT = 4, 20
    a("s_and_b32 s26, s3, 1")
    a("s_lshr_b32 s27, s3, 1")
    a("v_and_b32 v2, 15, v0")
    a("v_lshrrev_b32 v3, 4, v0")
    a("v_and_b32 v4, 7, v2")
    a("v_lshrrev_b32 v5, 3, v2")
    a("v_lshl_add_u32 v4, v5, 4, v4")
    a("v_lshrrev_b32 v5, 1, v2")
    a("v_xor_b32 v5, v5, v3")
    a("v_lshlrev_b32 v6, 7, v4")
    a("v_lshl_add_u32 v6, v5, 4, v6")
    a("s_lshl_b32 s28, s26, 13")
    a(f"s_add_u32 s28, s28, {G1_BASE}")
    a(f"v_add_u32 v{XA}, s28, v6")
    a(f"v_xor_b32 v{XA+1}, 64, v{XA}")
    for st in range(1, NS):
        a(f"v_add_u32 v{XA+2*st}, {st*G1_ST}, v{XA}")
        a(f"v_add_u32 v{XA+2*st+1}, {st*G1_ST}, v{XA+1}")
    a("v_bfe_u32 v5, v0, 2, 2")
    a("v_lshl_add_u32 v6, v3, 3, v5")
    a("v_lshlrev_b32 v6, 7, v6")
    a("v_bfe_u32 v7, v0, 1, 1")
    a("s_lshl_b32 s28, s27, 2")
    a("v_or_b32 v7, s28, v7")
    a("v_lshrrev_b32 v5, 1, v5")
    a("v_lshlrev_b32 v5, 2, v5")
    a("v_xor_b32 v7, v7, v5")
    a("v_and_b32 v5, 1, v3")
    a("v_lshlrev_b32 v5, 1, v5")
    a("v_xor_b32 v7, v7, v5")
    a("v_lshl_add_u32 v6, v7, 4, v6")
    a("v_and_b32 v5, 1, v0")
    a("v_lshl_add_u32 v6, v5, 3, v6")
    a(f"v_add_u32 v{WA}, {G1_BASE+16384}, v6")
    a(f"v_xor_b32 v{WA+1}, 32, v{WA}")
    for st in range(1, NS):
        a(f"v_add_u32 v{WA+2*st}, {st*G1_ST}, v{WA}")
        a(f"v_add_u32 v{WA+2*st+1}, {st*G1_ST}, v{WA+1}")
    a("s_and_b32 s35, s2, 15")
    a("s_lshr_b32 s36, s2, 4")
    a("s_lshl_b32 s37, s35, 4")
    a("s_add_u32 s37, s37, s36")
    a("s_lshl_b32 s37, s37, 2")
    a("s_lshl_b32 s36, s36, 2")
    a("s_add_u32 s36, s36, s3")
    a("s_lshl_b32 s35, s35, 6")
    a("s_lshl_b32 s36, s36, 5")
    a(f"v_lshl_add_u32 v{KW}, v2, 2, s35")
    a(f"v_lshl_add_u32 v{KW+1}, v3, 3, s36")
    a(f"v_lshlrev_b32 v1, 11, v{KW+1}")
    a(f"v_lshl_add_u32 v1, v{KW}, 1, v1")
    a(f"v_lshlrev_b32 v{VT}, 3, v{KW}")
    a("s_lshl_b32 s38, s35, 12")
    a("s_lshl_b32 s39, s36, 7")
    a("s_add_u32 s38, s38, s39")
    a("v_lshlrev_b32 v254, 6, v2")
    a("v_lshl_add_u32 v254, v3, 4, v254")
    a("v_add_u32 v254, s38, v254")
    a("v_lshlrev_b32 v2, 4, v0")
    for i in range(96): a(f"v_mov_b32 v{ACC+i}, 0")
    a("s_waitcnt lgkmcnt(0)")
    sync_srds(a)
    srd(a, 8, "k", 4 * MB)
    srd(a, 12, "v", 4 * MB)
    srd(a, 16, "shk", 8192)
    srd(a, 20, "ws", 4 * MB, WS_UT)
    a("s_or_b32 s28, s2, s3")
    a("s_cmp_lg_u32 s28, 0")
    a("s_cbranch_scc1 g1_noclear")
    a(f"v_lshlrev_b32 v{KW}, 4, v0")
    for j in range(4):
        a(f"buffer_store_dwordx4 {v(ACC,4)}, v{KW}, s[68:71], 0 offen offset:{1024*j} sc1")
    a("s_waitcnt vmcnt(0)")
    a(f"v_mov_b32 v{KW+1}, 1")
    a(f"buffer_store_dword v{KW+1}, v{ACC}, s[72:75], 0 offen sc1")
    a("s_nop 1")
    a.label("g1_noclear")
    vm = Tracker(a, "vmcnt", 63)
    lg = Tracker(a, "lgkmcnt", 15)
    nt = opt("prent", "nt")
    def pre_loads():
        ops = []
        for j in range(2):
            ops.append(("vm", f"buffer_load_dwordx4 {v(WR+4*j,4)}, v{VT}, s[16:19], 0 offen offset:{16*j}", "pre"))
        for r in range(11):
            first = (r % 2 == 1 or r == 0)
            if first: ops.append(("i", f"v_add_u32 v{KW+(r&2)//2}, {((r-3)*2048) & 0xffffffff}, v1"))
            base = KW + ((r if first else r - 1) & 2) // 2
            ops.append(("vm", f"buffer_load_dwordx2 {v(KR+2*r,2)}, v{base}, s[8:11], 0 offen offset:{0 if first else 2048} {nt}", "pre"))
        for r in range(8):
            if r % 2 == 0: ops.append(("i", f"v_add_u32 v{KW+2+(r&2)//2}, {r*2048}, v1"))
            ops.append(("vm", f"buffer_load_dwordx2 {v(VR+2*r,2)}, v{KW+2+(r&2)//2}, s[12:15], 0 offen offset:{(r%2)*2048} {nt}", "pre"))
        return ops
    def pre_compute():
        ops = [("need", "pre")]
        for c in range(4):
            dw, hi = c // 2, c % 2
            for j in range(4): ops.append(("i", unpack(WF + j, WR + 2 * c + j // 2, j % 2)))
            for r in range(3): ops.append(("i", unpack(KW + r, KR + 2 * r + dw, hi)))
            for r in range(8):
                ops.append(("i", unpack(KW + (r + 3) % 4, KR + 2 * (r + 3) + dw, hi)))
                d = AC + (r & 1)
                ops.append(("i", f"v_mul_f32 v{d}, v{KW+r%4}, v{WF+3}"))
                ops.append(("i", unpack(VT, VR + 2 * r + dw, hi)))
                for j in (2, 1, 0):
                    ops.append(("i", f"v_fmac_f32 v{d}, v{KW+(r+3-j)%4}, v{WF+j}"))
                ops.append(("i", f"v_mul_f32 v{d}, v{d}, v{VT}"))
                if r & 1: ops.append(("i", f"v_cvt_pk_bf16_f32 v{OUT+r//2}, v{AC}, v{AC+1}"))
            ops.append(("vm", f"buffer_store_dwordx4 {v(OUT,4)}, v254, s[20:23], 0 offen offset:{c*1024} {ST}", "prest"))
            if c == 2:
                ops.append(("i", f"v_mov_b32 v1, 0"))
                ops.append(("vm", f"buffer_load_dword v{GO}, v1, s[72:75], 0 offen sc1", "go"))
        return ops
    def emit(op):
        if op[0] == "i": a(op[1])
        elif op[0] == "vm": vm.issue(op[1], op[2])
        elif op[0] == "need": vm.need(op[1])
        elif op[0] == "call": op[1]()
    def xf(sn, x): return F0 + 40 * sn + 4 * x
    def wf(sn, w): return F0 + 40 * sn + 16 + 4 * w
    def reads(sn, st, ks):
        def xr(x): return (f"ds_read_b128 {v(xf(sn,x),4)}, v{XA+2*st+ks} offset:{(x>>1)*4096+(x&1)*1024}", ("x", sn, x))
        def wr(w, h):
            b, ft = w >> 1, w & 1
            return (f"ds_read_b64_tr_b16 {v(wf(sn,w)+2*h,2)}, v{WA+2*st+ft} offset:{b*8192+ks*4096+h*512}", ("w", sn, w))
        r = [xr(0), xr(1), xr(2), xr(3), wr(0, 0), wr(0, 1)]
        for w in range(1, 6): r += [wr(w, 0), wr(w, 1)]
        return r
    def mfma(sn, w, x):
        acc = v(ACC + 4 * (4 * w + x), 4)
        xr_, wr_ = v(xf(sn, x), 4), v(wf(sn, w), 4)
        if w < 4: return f"v_mfma_f32_16x16x32_bf16 {acc}, {wr_}, {xr_}, {acc}"
        return f"v_mfma_f32_16x16x32_bf16 {acc}, {xr_}, {wr_}, {acc}"
    extra = []
    def tile_code(st, last=False):
        for ks in range(2):
            cur, nxt = ks, ks ^ 1
            if ks == 0: nr = reads(nxt, st, 1)
            else: nr = [] if last else reads(nxt, (st + 1) % NS, 0)
            start = 0 if ks == 0 else 4
            nslots = 24 - start - 2
            slots = sorted(set(start + (i * nslots) // 16 for i in range(16)))
            m = 0
            for w in range(6):
                for x in range(4):
                    if m % 8 == 0:
                        lg.need(*([("x", cur, y) for y in range(4)] + [("w", cur, w), ("w", cur, w + 1)]))
                    if ks == 1 and m == start and not last: lg.drain()
                    a(mfma(cur, w, x))
                    if ks == 1 and m == start and not last: a("s_barrier")
                    if m in slots and nr:
                        t, g = nr.pop(0); lg.issue(t, g)
                    if extra: emit(extra.pop(0))
                    m += 1
            assert not nr
    PL, PC = opt("pl", 0), opt("pc", 3)
    if PL < 0:
        for op in pre_loads(): emit(op)
    if PC >= 0:
        a(f"s_waitcnt vmcnt({len(vm.q)})")
    if PC < 0:
        for op in pre_compute(): emit(op)
    a("s_barrier")
    stamp(a, 1)
    for t, g in reads(0, 0, 0): lg.issue(t, g)
    NPEEL = opt("peel", 9)
    def pre_signal():
        lg.drain()
        vm.drain()
        go_check(a, GO, VT)
        a(f"s_add_u32 s38, s37, {FL_PRE}")
        a("s_getreg_b32 s39, hwreg(HW_REG_XCC_ID)")
        a("s_and_b32 s39, s39, 15")
        a("s_add_u32 s39, s39, 1")
        signal(a, C_PRE, 4, 38, AC, AC + 1, val_s=39)
    for kt in range(NPEEL):
        if kt == PL: extra += pre_loads()
        if kt == PC: extra += pre_compute()
        tile_code(kt % NS)
    for op in extra: emit(op)
    extra.clear()
    q0 = list(lg.q)
    SIGT = opt("sigt", NPEEL + 3)
    nloop = (15 - NPEEL) // NS
    assert NPEEL + nloop * NS == 15
    a(f"s_mov_b32 s29, {nloop}")
    if opt("al", -1) >= 0:
        a(".p2align 6")
        for _ in range(opt("al", 0)): a("s_nop 0")
    a.label("g1_cloop")
    for i in range(NS): tile_code((NPEEL + i) % NS)
    assert lg.q == q0
    a(f"s_cmp_lg_u32 s29, {nloop - opt('sigit', 0)}")
    a("s_cbranch_scc1 g1_nosig")
    sv = list(lg.q)
    pre_signal()
    stamp(a, 2)
    lg.q = sv
    a.label("g1_nosig")
    a("s_sub_u32 s29, s29, 1")
    a("s_cmp_lg_u32 s29, 0")
    a("s_cbranch_scc1 g1_cloop")
    tile_code(15 % NS, last=True)
    stamp(a, 3)
    srd(a, 16, "ws", 4 * MB, WS_Q)
    srd(a, 12, "ws", 8 * MB, WS_KV)
    a("s_lshl_b32 s31, s24, 2")
    a("s_lshl_b32 s30, s26, 1")
    a("s_add_u32 s37, s30, s31")
    for b in range(3):
        hp_of(a, 30, b=b)
        a("s_lshl_b32 s30, s30, 1")
        a("s_add_u32 s30, s30, s27")
        if b == 0:
            a("s_lshl_b32 s31, s37, 5")
            a("s_add_u32 s31, s31, s30")
            a("s_lshl_b32 s31, s31, 11")
            a("s_add_u32 s38, s31, 65536")
        else:
            a("s_lshl_b32 s30, s30, 6")
            a("s_add_u32 s30, s30, s37")
            r = 32 + 2 * (b - 1)
            a(f"s_lshl_b32 s{r}, s30, 12")
            a(f"s_add_u32 s{r+1}, s{r}, 4096")
    C = 0.17677669529663687 * 1.4426950408889634
    a(f"s_mov_b32 s36, {hex(fbits(C))}")
    def pack(d, r0, r1):
        a(f"v_cvt_pk_bf16_f32 v{d}, v{r0}, v{r0+1}")
        a(f"v_cvt_pk_bf16_f32 v{d+1}, v{r0+2}, v{r0+3}")
        a(f"v_cvt_pk_bf16_f32 v{d+2}, v{r1}, v{r1+1}")
        a(f"v_cvt_pk_bf16_f32 v{d+3}, v{r1+2}, v{r1+3}")
    for i in range(32): a(f"v_mul_f32 v{ACC+i}, s36, v{ACC+i}")
    sts = []
    n = 0
    for x in range(4):
        d = F0 + 4 * n; n += 1
        pack(d, ACC + 4 * (8 + x), ACC + 4 * (12 + x))
        sts.append(f"buffer_store_dwordx4 {v(d,4)}, v2, s[12:15], s{32+(x>>1)} offen offset:{(x&1)*1024}")
    for x in range(4):
        d = F0 + 4 * n; n += 1
        pack(d, ACC + 4 * x, ACC + 4 * (4 + x))
        sts.append(f"buffer_store_dwordx4 {v(d,4)}, v2, s[16:19], s{38 if x>>1 else 31} offen offset:{(x&1)*1024}")
    for b2 in range(2):
        for ft in range(2):
            d = F0 + 4 * n; n += 1
            pack(d, ACC + 4 * (4 * (4 + ft) + 2 * b2), ACC + 4 * (4 * (4 + ft) + 2 * b2 + 1))
            sts.append(f"buffer_store_dwordx4 {v(d,4)}, v2, s[12:15], s{34+b2} offen offset:{2048+ft*1024}")
    a("s_and_b32 s39, s2, 7")
    a("s_lshl_b32 s39, s39, 5")
    a("s_lshr_b32 s30, s2, 3")
    a("s_add_u32 s39, s39, s30")
    a("s_lshl_b32 s39, s39, 2")
    a(f"s_add_u32 s39, s39, {FL_G1}")
    lds_wait(a, C_MODE, 1, 4, 5)
    a("s_cmp_eq_u32 s7, 1")
    a("s_cbranch_scc0 g1_stg")
    for x in sts: a(x)
    a("s_waitcnt vmcnt(0)")
    signal(a, C_G1, 4, 39, 4, 5, fl="")
    a("s_branch g1_std")
    a.label("g1_stg")
    for x in sts: a(x + " sc1")
    a("s_waitcnt vmcnt(0)")
    signal(a, C_G1, 4, 39, 4, 5)
    a.label("g1_std")
    stamp(a, 4)

def g1_loader(a):
    D = NS - 1
    CPK = 13
    a("s_sub_u32 s26, s3, 4")
    a("v_lshrrev_b32 v2, 3, v0")
    a("v_and_b32 v3, 7, v0")
    a("v_lshrrev_b32 v4, 4, v0")
    a("v_xor_b32 v5, v3, v4")
    a("v_lshlrev_b32 v6, 11, v2")
    a("v_lshl_add_u32 v8, v5, 4, v6")
    a("v_xor_b32 v9, 64, v8")
    a("v_and_b32 v4, 1, v4")
    a("v_lshlrev_b32 v4, 2, v4")
    a("v_xor_b32 v5, v3, v4")
    a("v_mul_u32_u24 v6, 6144, v2")
    a("v_lshl_add_u32 v10, v5, 4, v6")
    a("v_xor_b32 v11, 32, v10")
    a("s_lshl_b32 s27, s24, 7")
    a("s_lshl_b32 s28, s26, 5")
    a("s_add_u32 s27, s27, s28")
    a("s_lshl_b32 s27, s27, 11")
    a("s_lshl_b32 s28, s26, 12")
    a(f"s_add_u32 s28, s28, {G1_BASE}")
    a("s_mul_i32 s29, s26, 6")
    a("s_lshl_b32 s30, s29, 10")
    a(f"s_add_u32 s30, s30, {G1_BASE+16384}")
    for j in range(6):
        a(f"s_add_u32 s31, s29, {j}")
        a("s_lshr_b32 s32, s31, 3")
        a("s_and_b32 s31, s31, 7")
        a(f"s_mul_i32 s31, s31, {8*6144}")
        hp_of(a, 34, b_s=32)
        a("s_lshl_b32 s34, s34, 7")
        a("s_lshl_b32 s32, s32, 11")
        a("s_add_u32 s31, s31, s32")
        a(f"s_add_u32 s{40+j}, s31, s34")
    rot = opt("rot", 4)
    a(f"s_mul_i32 s46, s25, {opt('rotc', 1)}")
    a(f"s_lshr_b32 s46, s46, {opt('rots', 0)}")
    a(f"s_mul_i32 s47, s24, {opt('rotm', 1)}")
    a("s_add_u32 s46, s46, s47")
    a(f"s_and_b32 s46, s46, {rot-1}")
    a("v_mov_b32 v12, 0")
    a("v_lshlrev_b32 v13, 2, v0")
    a("ds_write_b32 v13, v12")
    a("s_waitcnt lgkmcnt(0)")
    srd(a, 8, "x", 4 * MB)
    srd(a, 12, "wqkv", 6 * MB)
    vm = Tracker(a, "vmcnt", 63)
    def issue(kt):
        slot = kt % NS
        a(f"s_add_u32 s47, s46, {kt % rot}")
        a(f"s_and_b32 s47, s47, {rot-1}")
        a(f"s_add_u32 s47, s47, {kt - kt % rot}")
        a("s_lshl_b32 s37, s47, 7")
        a("s_add_u32 s37, s37, s27")
        a(f"s_mul_i32 s47, s47, {64*6144}")
        for j in range(4):
            a(f"s_add_u32 m0, s28, {slot*G1_ST + j*1024}")
            a(f"s_add_u32 s33, s37, {j*16384}")
            vm.issue(f"buffer_load_dwordx4 v{8+(j>>1)}, s[8:11], s33 offen lds", ("t", kt))
        for j in range(6):
            a(f"s_add_u32 m0, s30, {slot*G1_ST + j*1024}")
            a(f"s_add_u32 s33, s{40+j}, s47")
            vm.issue(f"buffer_load_dwordx4 v{10+(j&1)}, s[12:15], s33 offen lds", ("t", kt))
    for kt in range(2): issue(kt)
    sync_srds(a)
    for kt in range(16):
        vm.need(("t", kt))
        a("s_barrier")
        if kt + D <= 15: issue(kt + D)
        if kt == CPK: conv_pre(a, vm)
        if kt == 14:
            vm.need("go")
            go_check(a, 15, 14)
            vm.issue("buffer_load_dword v17, v16, s[68:71], 0 offen sc1", "cls")
    a("s_cmp_lg_u32 s3, 4")
    a("s_cbranch_scc1 ld_nomode")
    a("s_waitcnt vmcnt(0)")
    a("v_cmp_eq_u32 vcc, 0, v17")
    a("s_cmp_eq_u64 vcc, 0")
    a("s_cbranch_scc1 ld_have")
    poll(a, 16, 17)
    a.label("ld_have")
    a("v_readfirstlane_b32 s7, v17")
    a("v_cmp_ne_u32 vcc, s7, v17")
    a("s_cmp_eq_u64 vcc, 0")
    a(f"s_cselect_b32 s7, {2 if opt('forceglobal', 0) else 1}, 2")
    a("v_mov_b32 v3, 0")
    a("v_mov_b32 v4, s7")
    a(f"ds_write_b32 v3, v4 offset:{C_MODE}")
    a.label("ld_nomode")
    return vm

UB, HB = 256, 4416
def conv_pre(a, vm):
    srd(a, 16, "ssmk", 4 * MB)
    srd(a, 20, "ssmD", 2048)
    a(f"s_mul_i32 s48, s26, {CONV_LDS}")
    a(f"s_add_u32 s48, s48, {CV_BASE}")
    a("s_lshl_b32 s49, s2, 2")
    a("s_add_u32 s49, s49, s26")
    a("s_lshl_b32 s50, s49, 1")
    a("s_lshl_b32 s49, s49, 12")
    a("v_lshlrev_b32 v2, 4, v0")
    vm.issue(go_issue(a, 15, 14), "go")
    a("v_and_b32 v3, 31, v0")
    a("s_and_b32 s50, s2, 7")
    a("v_lshl_add_u32 v3, v3, 3, s50")
    a("v_and_b32 v4, 15, v3")
    a("v_lshrrev_b32 v3, 4, v3")
    a("v_lshl_add_u32 v3, v4, 4, v3")
    a(f"v_lshlrev_b32 v16, 2, v3")
    if FL_PRE: a(f"v_add_u32 v16, {FL_PRE}, v16")
    a("s_lshr_b32 s50, s49, 11")
    a(f"s_add_u32 m0, s48, {HB}")
    for j in range(4):
        vm.issue(f"buffer_load_dwordx4 v2, s[16:19], s49 offen offset:{j*1024} {opt('hnt','nt')} lds", "h")
    a("v_mov_b32 v3, s50")
    a("v_mov_b32 v4, s49")
    vm.issue("buffer_load_ushort v12, v3, s[20:23], 0 offen", "h")
    vm.issue("buffer_load_ushort v13, v4, s[16:19], 0 offen", "h")
    a("v_mov_b32 v4, 0")
    a("v_lshl_add_u32 v3, v0, 2, s48")
    a("ds_write_b32 v3, v4")
    a("v_and_b32 v5, 15, v0")
    a("v_lshl_add_u32 v5, v5, 2, s48")
    a(f"ds_write_b32 v5, v4 offset:{UB+4096}")

def conv_main(a, vm):
    L = 48
    vm.drain()
    a("s_lshr_b32 s27, s2, 4")
    a("s_lshl_b32 s27, s27, 6")
    a("v_and_b32 v3, 15, v0")
    a("v_lshl_add_u32 v3, v3, 2, s27")
    if FL_PRE: a(f"v_add_u32 v3, {FL_PRE}, v3")
    poll(a, 3, 4)
    stamp(a, 2)
    srd(a, 12, "ws", 4 * MB, WS_UT)
    srd(a, 16, "ws", 4 * MB, WS_YT)
    a("s_lshr_b32 s27, s2, 4")
    a("s_lshl_b32 s27, s27, 18")
    a("s_and_b32 s28, s2, 15")
    a("s_lshl_b32 s28, s28, 6")
    a("s_add_u32 s27, s27, s28")
    a("s_lshl_b32 s28, s26, 10")
    a("s_add_u32 s27, s27, s28")
    a("v_lshrrev_b32 v4, 2, v0")
    a("v_lshlrev_b32 v4, 12, v4")
    a("v_and_b32 v5, 3, v0")
    a("v_lshl_add_u32 v4, v5, 4, v4")
    for j in range(4):
        a(f"s_add_u32 m0, s{L}, {UB+j*1024}")
        a(f"s_add_u32 s28, s27, {j*65536}")
        a(f"buffer_load_dwordx4 v4, s[12:15], s28 offen {opt('ld','')} lds")
    a("v_lshrrev_b32 v4, 4, v0")
    a("v_bfe_u32 v5, v0, 2, 2")
    a("v_and_b32 v6, 3, v0")
    a("v_lshlrev_b32 v7, 2, v6")
    a("v_sub_u32 v7, v7, v5")
    a("v_lshlrev_b32 v8, 3, v4")
    a("v_sub_u32 v7, v7, v8")
    a("v_lshlrev_b32 v7, 3, v7")
    a(f"v_add_u32 v7, {UB+24-32}, v7")
    a(f"v_add_u32 v10, s{L}, v7")
    a("v_add3_u32 v7, v8, v5, v6")
    a("v_lshlrev_b32 v7, 3, v7")
    a(f"v_add_u32 v7, {HB-24}, v7")
    a(f"v_add_u32 v11, s{L}, v7")
    a("v_cmp_eq_u32 s[28:29], 63, v0")
    a(f"v_mov_b32 v3, s{L}")
    a("v_mov_b32 v14, 0")
    B0, A0, ACC, E = 16, 80, 96, 224
    a("v_lshlrev_b32 v12, 16, v12")
    a("v_lshlrev_b32 v13, 16, v13")
    a("v_add_f32 v12, v12, v13")
    a("v_cvt_pk_bf16_f32 v12, v12, v12")
    lg = Tracker(a, "lgkmcnt", 15)
    lg.issue(f"ds_write_b16 v3, v12 offset:{HB}", "misc")
    def aread(d):
        r = A0 + 4 * (d % 4)
        lg.issue(f"ds_read_b64_tr_b16 {v(r,2)}, v10 offset:{128*d+32}", ("a", d))
        lg.issue(f"ds_read_b64_tr_b16 {v(r+2,2)}, v10 offset:{128*d}", ("a", d))
    def bread(sN):
        lg.issue(f"ds_read_b64_tr_b16 {v(B0+4*sN,2)}, v11 offset:{256*sN}", ("b", sN))
        lg.issue(f"ds_read_b64_tr_b16 {v(B0+4*sN+2,2)}, v11 offset:{256*sN+32}", ("b", sN))
    for sN in range(16):
        bread(sN)
        if sN % 4 == 3: lg.need(("b", sN - 2))
    a("s_waitcnt vmcnt(0)")
    stamp(a, 3)
    aread(0); aread(1); aread(2)
    started = set()
    def epi(T):
        r = ACC + 4 * T; p = ACC + 4 * (T - 1)
        e = E + 3 * (T % 2)
        ops = []
        for lvl, x in enumerate((3, 2, 1)):
            prev = f"v{p+x}" if T > 0 else "v14"
            ops.append(f"v_cndmask_b32 v{e+lvl}, v{r+x}, {prev}, s[28:29]")
            ops.append(f"v_add_f32_dpp v{r+x-1}, v{e+lvl}, v{r+x-1} wave_ror:1 row_mask:0xf bank_mask:0xf")
        return ops
    pending = []
    for d in range(32):
        n = (31 - d) // 2 + 1
        if d >= 3: pending += epi(d - 3)
        for sN in range(n):
            T = d + 2 * sN
            lg.need(("a", d), ("b", sN))
            acc = v(ACC + 4 * T, 4)
            c = acc if T in started else "0"
            started.add(T)
            a(f"v_mfma_f32_16x16x32_bf16 {acc}, {v(A0+4*(d%4),4)}, {v(B0+4*sN,4)}, {c}")
            if sN == 0 and d + 3 < 32: aread(d + 3)
            if pending and sN % 2 == 1: a(pending.pop(0))
            if pending and d >= 20: a(pending.pop(0))
    for T in range(29, 32): pending += epi(T)
    for x in pending: a(x)
    for c in range(4):
        for p in range(4):
            T = 8 * c + 2 * p
            a(f"v_cvt_pk_bf16_f32 v{B0+4*c+p}, v{ACC+4*T}, v{ACC+4*T+4}")
        a(f"buffer_store_dwordx4 {v(B0+4*c,4)}, v2, s[16:19], s49 offen offset:{1024*c} {ST}")
    a("s_lshl_b32 s38, s2, 2")
    a(f"s_add_u32 s38, s38, {FL_CONV}")
    a("s_waitcnt vmcnt(0)")
    signal(a, C_CONV, 4, 38, 4, 5)
    stamp(a, 4)

def att_decode(a):
    a("s_and_b32 s22, s2, 7")
    a("s_lshr_b32 s23, s2, 3")
    a("s_lshl_b32 s24, s22, 2")
    a("s_lshr_b32 s25, s23, 3")
    a("s_add_u32 s24, s24, s25")
    a("s_and_b32 s30, s23, 7")
    a("s_lshl_b32 s25, s30, 3")
    a("s_add_u32 s25, s25, s3")
    a("s_mov_b32 s39, s3")
    a("v_lshlrev_b32 v2, 4, v0")
    a("v_bfe_u32 v1, v0, 3, 1")
    a("v_lshlrev_b32 v1, 10, v1")
    a("v_lshrrev_b32 v6, 5, v0")
    a("v_lshl_add_u32 v1, v6, 8, v1")
    a("v_bfe_u32 v6, v0, 4, 1")
    a("v_lshl_add_u32 v1, v6, 7, v1")
    a("v_and_b32 v6, 7, v0")
    a("v_lshl_add_u32 v1, v6, 4, v1")

def att_stage(a):
    a("s_lshl_b32 s26, s30, 4")
    a("s_sub_u32 s26, s26, 16")
    a("v_and_b32 v3, 7, v0")
    a("v_lshl_add_u32 v3, v3, 2, s26")
    a("v_max_i32 v3, 0, v3")
    a("s_lshl_b32 s26, s22, 7")
    a(f"s_add_u32 s26, s26, {FL_G1}")
    a("v_add_u32 v3, s26, v3")
    a("s_cmp_lg_u32 s3, 0")
    a("s_cbranch_scc1 st_wait")
    poll(a, 3, 4)
    lds_add(a, C_G1OK, 4, 5)
    a("s_branch st_go")
    a.label("st_wait")
    lds_wait(a, C_G1OK, 1, 4, 5)
    a.label("st_go")
    stamp(a, 5)
    srd(a, 12, "ws", 8 * MB, WS_KV)
    a("s_lshl_b32 s26, s24, 6")
    a("s_lshl_b32 s27, s30, 3")
    a("s_add_u32 s26, s26, s27")
    a("s_lshl_b32 s27, s3, 2")
    a("s_add_u32 s27, s27, s26")
    a("s_lshl_b32 s27, s27, 12")
    a(f"s_sub_u32 s27, s27, {8*4096}")
    a("s_lshl_b32 s28, s30, 2")
    a("s_add_u32 s28, s28, s3")
    a("s_cmp_lt_u32 s28, 2")
    a("s_cselect_b32 s27, 0x40000000, s27")
    a("v_add_u32 v4, s27, v2")
    a("s_lshl_b32 s28, s3, 13")
    ld = opt('ld', '')
    for part in range(2):
        for i in range(4):
            a(f"v_add_u32 v5, {i*4096 + part*2048}, v4")
            a(f"s_add_u32 m0, s28, {KV_BASE + part*32768 + i*2048}")
            a(f"buffer_load_dwordx4 v5, s[12:15], 0 offen {ld} lds")
            a(f"buffer_load_dwordx4 v5, s[12:15], 0 offen offset:1024 {ld} lds")

def att_setup(a):
    a("v_and_b32 v5, 31, v0")
    a("v_lshrrev_b32 v6, 5, v0")
    a("v_lshlrev_b32 v7, 2, v6")
    a("v_sub_u32 v7, v5, v7")
    a("v_lshrrev_b32 v3, 4, v5")
    a("v_lshlrev_b32 v3, 10, v3")
    a("v_lshl_add_u32 v3, v6, 8, v3")
    a("v_and_b32 v5, 15, v5")
    a("v_lshl_add_u32 v3, v5, 4, v3")

AQ, AKV, AS, AP, AO, AL, AONE, AMK, ACB, AT = 8, 16, 64, 112, 128, 144, 148, 152, 160, 176
def att_fast(a, wdma):
    Q, KV, S, PB, O, L, ONE, MK, CB, T = AQ, AKV, AS, AP, AO, AL, AONE, AMK, ACB, AT
    lg = Tracker(a, "lgkmcnt", 15)
    a("v_mov_b32 v5, 0xffff")
    a("v_mov_b32 v6, 0xffff0000")
    for j in range(8):
        i0, i1 = 2 * j, 2 * j + 1
        a(f"v_cmp_le_i32 vcc, {8*(i0//4)+i0%4}, v7")
        a(f"v_cndmask_b32 v{MK+j}, 0, v5, vcc")
        a(f"v_cmp_le_i32 vcc, {8*(i1//4)+i1%4}, v7")
        a(f"v_cndmask_b32 v{T}, 0, v6, vcc")
        a(f"v_or_b32 v{MK+j}, v{MK+j}, v{T}")
    a(f"v_lshrrev_b32 v{T}, 4, v0")
    a(f"v_lshrrev_b32 v{T+1}, 2, v0")
    a(f"v_xor_b32 v{T}, v{T}, v{T+1}")
    a(f"v_and_b32 v{T}, 1, v{T}")
    a(f"v_cmp_eq_u32 vcc, 0, v{T}")
    a(f"v_mov_b32 v{T+1}, 0x3f803f80")
    for j in range(4): a(f"v_cndmask_b32 v{ONE+j}, 0, v{T+1}, vcc")
    for i in range(16): a(f"v_mov_b32 v{CB+i}, 0")
    a("s_lshl_b32 s26, s39, 11")
    a(f"s_add_u32 s26, s26, {KV_BASE}")
    a("v_add_u32 v4, s26, v1")
    a("v_add_u32 v3, s26, v3")
    lds_wait(a, C_K, 4, 5, 6)
    stamp(a, 6)
    order = [8, 7, 6, 5, 4, 3, 2, 1, 0]
    def kreg(n): return KV + 8 * (n % 3)
    def vreg(n): return KV + 24 + 8 * (n % 3)
    def sreg(n): return S + 32 if n == 0 else S + 16 * (n % 2)
    def kread(n):
        j = order[n]
        lg.issue(f"ds_read_b128 {v(kreg(n),4)}, v4 offset:{j*2048}", ("k", n))
        lg.issue(f"ds_read_b128 {v(kreg(n)+4,4)}, v4 offset:{j*2048+512}", ("k", n))
    vseq = [1, 2, 3, 4, 5, 6, 7, 8, 0]
    def vread(m):
        j = order[vseq[m]]
        lg.issue(f"ds_read_b128 {v(vreg(m),4)}, v3 offset:{32768+j*2048}", ("v", m))
        lg.issue(f"ds_read_b128 {v(vreg(m)+4,4)}, v3 offset:{32768+j*2048+512}", ("v", m))
    ool = []
    def qk(n):
        j = order[n]
        if j < 8:
            a(f"s_cmp_eq_u32 s25, {7-j}")
            a(f"s_cbranch_scc1 af_inv{j}")
            a.label(f"af_back{j}")
            ool.append(j)
        lg.need(("k", n))
        acc = v(sreg(n), 16)
        a(f"v_mfma_f32_32x32x16_bf16 {acc}, {v(kreg(n),4)}, {v(Q,4)}, {'0' if j == 8 else v(CB,16)}")
        a(f"v_mfma_f32_32x32x16_bf16 {acc}, {v(kreg(n)+4,4)}, {v(Q+4,4)}, {acc}")
        if n + 3 < 9: kread(n + 3)
    first = [True, True]
    def pv(m, pb, dosum=True):
        lg.need(("v", m))
        for t in range(2):
            a(f"v_mfma_f32_32x32x16_bf16 {v(O,16)}, {v(vreg(m)+4*t,4)}, {v(pb+4*t,4)}, {'0' if first[0] else v(O,16)}")
            first[0] = False
        if m + 3 < 9: vread(m + 3)
    def psum(pb):
        for t in range(2):
            a(f"v_mfma_f32_16x16x32_bf16 {v(L,4)}, {v(ONE,4)}, {v(pb+4*t,4)}, {'0' if first[1] else v(L,4)}")
            first[1] = False
    for n in range(3): kread(n)
    a("s_waitcnt vmcnt(0)")
    a("s_cmp_ge_u32 s3, 4")
    a("s_cbranch_scc1 af_nov")
    sv = list(lg.q)
    lds_add(a, C_V, 5, 6)
    a.label("af_nov")
    lg.drain()
    qk(0); qk(1); qk(2)
    lds_wait(a, C_V, 4, 5, 6)
    lg.q = []
    for m in range(3): vread(m)
    pend = None
    for n in range(1, 9):
        b = sreg(n)
        pb = PB + 8 * (n % 2)
        if n == 8:
            for i in range(16):
                a(f"v_cmp_le_i32 vcc, {8*(i//4)+i%4}, v7")
                a(f"v_cndmask_b32 v{b+i}, v{b+i}, v{sreg(0)+i}, vcc")
        for i in range(8):
            a(f"v_exp_f32 v{b+i}, v{b+i}")
        if pend: pv(*pend); psum(pend[1]); pend = None
        for i in range(8, 16):
            a(f"v_exp_f32 v{b+i}, v{b+i}")
        for i in range(8):
            a(f"v_cvt_pk_bf16_f32 v{pb+i}, v{b+2*i}, v{b+2*i+1}")
        if n + 2 < 9: qk(n + 2)
        for _ in range(2):
            if wdma: wdma.pop(0)()
        if n < 8: pend = (n - 1, pb)
    psum(pb)
    pd = PB + 8 * ((n + 1) % 2)
    for i in range(8):
        a(f"v_and_b32 v{pd+i}, v{MK+i}, v{pb+i}")
    pv(8, pd)
    for i in range(8):
        a(f"v_bfi_b32 v{S+i}, v{MK+i}, 0, v{pb+i}")
    pv(7, S)
    while wdma: wdma.pop(0)()
    lo, hi = (2.0 ** -60, 2.0 ** 60) if not opt("forceslow", 0) else (2.0 ** 60, 2.0 ** 61)
    a(f"v_cmp_lt_f32 vcc, {hex(fbits(lo))}, v{L}")
    a(f"s_mov_b32 s26, {hex(fbits(hi))}")
    a(f"v_cmp_gt_f32 s[28:29], s26, v{L}")
    a("s_and_b64 vcc, vcc, s[28:29]")
    a("s_cmp_eq_u64 vcc, exec")
    a("s_cbranch_scc0 att_slow")
    a(f"v_rcp_f32 v{T}, v{L}")
    a.label("att_fin")
    a("s_lshl_b32 s27, s25, 5")
    a("s_add_u32 s27, s27, s24")
    a("s_lshl_b32 s27, s27, 11")
    for i in range(16): a(f"v_mul_f32 v{O+i}, v{O+i}, v{T}")
    for i in range(8): a(f"v_cvt_pk_bf16_f32 v{KV+i}, v{O+2*i}, v{O+2*i+1}")
    a(f"buffer_store_dwordx4 {v(KV,4)}, v2, s[16:19], s27 offen {ST}")
    a(f"buffer_store_dwordx4 {v(KV+4,4)}, v2, s[16:19], s27 offen offset:1024 {ST}")
    def out_of_line():
        for j in ool:
            a.label(f"af_inv{j}")
            a("s_nop 7")
            for i in range(16): a(f"v_mov_b32 v{CB+i}, 0xf149f2ca")
            a("s_nop 1")
            a(f"s_branch af_back{j}")
        att_slow(a)
    return out_of_line

def att_slow(a):
    Q, KV, S, PB, O, L, ONE, MK, CB, T = AQ, AKV, AS, AP, AO, AL, AONE, AMK, ACB, AT
    a.label("att_slow")
    a("s_nop 15")
    def score(j, dst, tag):
        a(f"ds_read_b128 {v(KV,4)}, v4 offset:{j*2048}")
        a(f"ds_read_b128 {v(KV+4,4)}, v4 offset:{j*2048+512}")
        a("s_waitcnt lgkmcnt(0)")
        a(f"v_mfma_f32_32x32x16_bf16 {v(dst,16)}, {v(KV,4)}, {v(Q,4)}, 0")
        a(f"v_mfma_f32_32x32x16_bf16 {v(dst,16)}, {v(KV+4,4)}, {v(Q+4,4)}, {v(dst,16)}")
        a("s_nop 15")
        if j in (0, 8):
            a(f"v_mov_b32 v{T+3}, 0xf149f2ca")
            for i in range(16):
                a(f"v_cmp_le_i32 vcc, {8*(i//4)+i%4}, v7")
                if j == 8: a(f"v_cndmask_b32 v{dst+i}, v{T+3}, v{dst+i}, vcc")
                else: a(f"v_cndmask_b32 v{dst+i}, v{dst+i}, v{T+3}, vcc")
        if j < 8:
            a(f"s_cmp_ge_u32 s25, {8-j}")
            a(f"s_cbranch_scc1 {tag}{j}")
            for i in range(16): a(f"v_mov_b32 v{dst+i}, 0xf149f2ca")
            a.label(f"{tag}{j}")
    a(f"v_mov_b32 v{T}, 0xf149f2ca")
    for j in range(9):
        score(j, S, "as1_")
        for i in range(0, 16, 2): a(f"v_max3_f32 v{T}, v{T}, v{S+i}, v{S+i+1}")
    a(f"v_mov_b32 v{T+1}, v{T}")
    a(f"v_permlane32_swap_b32 v{T}, v{T+1}")
    a(f"v_max_f32 v{T}, v{T}, v{T+1}")
    for j in range(9):
        score(j, S, "as2_")
        a(f"ds_read_b128 {v(KV+8,4)}, v3 offset:{32768+j*2048}")
        a(f"ds_read_b128 {v(KV+12,4)}, v3 offset:{32768+j*2048+512}")
        for i in range(16): a(f"v_sub_f32 v{S+i}, v{S+i}, v{T}")
        for i in range(16): a(f"v_exp_f32 v{S+i}, v{S+i}")
        for i in range(8): a(f"v_cvt_pk_bf16_f32 v{PB+i}, v{S+2*i}, v{S+2*i+1}")
        a("s_waitcnt lgkmcnt(0)")
        for t in range(2):
            a(f"v_mfma_f32_32x32x16_bf16 {v(O,16)}, {v(KV+8+4*t,4)}, {v(PB+4*t,4)}, {'0' if (j==0 and t==0) else v(O,16)}")
        for t in range(2):
            a(f"v_mfma_f32_16x16x32_bf16 {v(L,4)}, {v(ONE,4)}, {v(PB+4*t,4)}, {'0' if (j==0 and t==0) else v(L,4)}")
        a("s_nop 15")
    a(f"v_rcp_f32 v{T}, v{L}")
    a("s_nop 1")
    a("s_branch att_fin")

def g2_decode(a):
    a("s_and_b32 s58, s2, 7")
    a("s_lshr_b32 s59, s2, 3")
    a("s_and_b32 s56, s58, 3")
    a("s_lshl_b32 s56, s56, 2")
    a("s_and_b32 s57, s59, 3")
    a("s_add_u32 s56, s56, s57")
    a("s_lshr_b32 s57, s58, 2")
    a("s_lshl_b32 s57, s57, 3")
    a("s_lshr_b32 s59, s59, 2")
    a("s_add_u32 s57, s57, s59")
    a("v_lshrrev_b32 v201, 3, v0")
    a("v_and_b32 v202, 7, v0")
    a("v_bfe_u32 v203, v0, 4, 1")
    a("v_lshlrev_b32 v203, 2, v203")
    a("v_xor_b32 v202, v202, v203")
    a("v_bfe_u32 v203, v0, 5, 1")
    a("v_lshlrev_b32 v203, 1, v203")
    a("v_xor_b32 v202, v202, v203")
    a("v_lshlrev_b32 v201, 11, v201")
    a("v_lshl_add_u32 v200, v202, 4, v201")
    srd(a, 60, "wo", 2 * MB)
    a("s_lshl_b32 s58, s3, 14")
    a("s_lshl_b32 s59, s57, 7")
    a("s_add_u32 s58, s58, s59")
    a("s_lshl_b32 s59, s3, 10")
    a(f"s_add_u32 s59, s59, {W_BASE}")
def w_piece(a, p8):
    def f():
        a(f"s_add_u32 m0, s59, {p8*8192}")
        a(f"s_add_u32 s64, s58, {p8*8*16384}")
        a("buffer_load_dwordx4 v200, s[60:63], s64 offen lds")
    return f

PQR, PYR, PT, POUT, PYA, PFA = 208, 216, 224, 232, 241, 242
def post_pre(a):
    QR, OUT = PQR, POUT
    a("s_lshl_b32 s39, s2, 3")
    a("s_add_u32 s39, s39, s3")
    a("s_and_b32 s28, s39, 15")
    a("s_lshr_b32 s29, s39, 4")
    a("s_and_b32 s30, s29, 7")
    a("s_lshr_b32 s29, s29, 3")
    a("v_and_b32 v4, 15, v0")
    a("s_lshl_b32 s31, s29, 6")
    a(f"s_add_u32 s31, s31, {FL_CONV}")
    a(f"v_lshl_add_u32 v{PFA}, v4, 2, s31")
    a("v_lshrrev_b32 v5, 4, v0")
    a("s_lshl_b32 s29, s29, 6")
    a("v_lshl_add_u32 v4, v4, 2, s29")
    a("s_lshl_b32 s28, s28, 2")
    a("v_add_u32 v5, s28, v5")
    a("s_lshr_b32 s31, s30, 1")
    a("s_lshl_b32 s31, s31, 10")
    a("s_and_b32 s32, s30, 1")
    a("s_lshl_b32 s32, s32, 3")
    a("s_add_u32 s31, s31, s32")
    a("v_lshlrev_b32 v6, 12, v4")
    a("v_lshl_add_u32 v6, v5, 4, v6")
    a(f"v_add_u32 v{PYA}, s31, v6")
    a("s_lshl_b32 s31, s30, 8")
    a("v_add_u32 v5, s31, v5")
    a("v_lshlrev_b32 v7, 11, v5")
    a("v_lshl_add_u32 v7, v4, 1, v7")
    a(f"v_lshlrev_b32 v{OUT+8}, 12, v5")
    a(f"v_lshl_add_u32 v{OUT+8}, v4, 1, v{OUT+8}")
    srd(a, 20, "q", 4 * MB)
    srd(a, 48, "ws", 4 * MB, WS_YT)
    srd(a, 16, "out", 8 * MB)
    for j in range(4):
        a(f"s_mov_b32 s31, {j*64*2048}")
        a(f"buffer_load_dwordx2 {v(QR+2*j,2)}, v7, s[20:23], s31 offen {opt('qnt','nt')}")
def post_yloads(a, vm):
    for c in range(4):
        a(f"s_mov_b32 s31, {c*4096}")
        vm.issue(f"buffer_load_dwordx2 {v(PYR+2*c,2)}, v{PYA}, s[48:51], s31 offen {opt('ld','')}", "y")
def post_fin(a, vm):
    QR, YR, T, OUT = PQR, PYR, PT, POUT
    vm.need("y")
    for j in range(4):
        for c in range(4):
            a(unpack(T + c, QR + 2 * j + c // 2, c % 2))
            a(unpack(T + 4 + c, YR + 2 * c + j // 2, j % 2))
        for c in range(4): a(f"v_mul_f32 v{T+c}, v{T+c}, v{T+4+c}")
        for p in range(2): a(f"v_cvt_pk_bf16_f32 v{OUT+2*j+p}, v{T+2*p}, v{T+2*p+1}")
        a(f"s_mov_b32 s31, {j*64*4096}")
        vm.issue(f"buffer_store_dwordx2 {v(OUT+2*j,2)}, v{OUT+8}, s[16:19], s31 offen {opt('outst','')}", "ps")

def gemm2(a):
    a("s_and_b32 s26, s3, 3")
    a("s_lshr_b32 s27, s3, 2")
    a("v_lshrrev_b32 v9, 4, v0")
    a("v_lshlrev_b32 v9, 9, v9")
    a("v_and_b32 v2, 15, v0")
    a("v_lshl_add_u32 v9, v2, 4, v9")
    a("s_lshl_b32 s35, s56, 2")
    a("s_add_u32 s35, s35, s26")
    a("s_lshl_b32 s35, s35, 16")
    a("s_lshl_b32 s36, s27, 15")
    a("s_add_u32 s35, s35, s36")
    srd(a, 8, "ws", 4 * MB, WS_O)
    WA, WFR, ACC, OF = 10, 16, 48, 80
    NOF = 12
    a("v_lshrrev_b32 v2, 4, v0")
    a("v_lshrrev_b32 v3, 1, v2")
    a("v_and_b32 v2, 1, v2")
    a("v_bfe_u32 v4, v0, 2, 2")
    a("v_lshlrev_b32 v5, 4, v3")
    a("v_lshl_add_u32 v5, v2, 2, v5")
    a("v_add_u32 v5, v5, v4")
    a("v_lshlrev_b32 v5, 7, v5")
    a("v_bfe_u32 v6, v0, 1, 1")
    a("v_lshrrev_b32 v4, 1, v4")
    a("v_lshl_add_u32 v6, v4, 2, v6")
    a("v_lshl_add_u32 v6, v2, 1, v6")
    a("v_lshl_add_u32 v5, v6, 4, v5")
    a("v_and_b32 v6, 1, v0")
    a("v_lshl_add_u32 v5, v6, 3, v5")
    a("s_lshl_b32 s36, s27, 16")
    a(f"s_add_u32 s36, s36, {W_BASE}")
    a(f"v_add_u32 v{WA}, s36, v5")
    for n in range(1, 4): a(f"v_xor_b32 v{WA+n}, {32*n}, v{WA}")
    a("s_lshr_b32 s36, s56, 1")
    a("s_lshl_b32 s36, s36, 7")
    a(f"s_add_u32 s36, s36, {FL_ATT}")
    a("v_and_b32 v2, 31, v0")
    a("v_lshl_add_u32 v2, v2, 2, s36")
    a("s_cmp_eq_u32 s3, 1")
    a("s_cselect_b64 vcc, -1, 0")
    a(f"v_cndmask_b32 v2, v2, v{PFA}, vcc")
    a("s_cmp_ge_u32 s3, 2")
    a("s_cbranch_scc1 g2_nopoll")
    poll(a, 2, 3)
    a.label("g2_nopoll")
    a("s_waitcnt vmcnt(0)")
    a("s_barrier")
    stamp(a, 10)
    vm = Tracker(a, "vmcnt", 63)
    lg = Tracker(a, "lgkmcnt", 15)
    LA = opt("ola", 8)
    ld = opt('ld', '')
    def oload(h):
        r = OF + 8 * (h % NOF)
        a(f"s_add_u32 s38, s35, {h*2048}")
        vm.issue(f"buffer_load_dwordx4 {v(r,4)}, v9, s[8:11], s38 offen {ld}", ("o", h))
        vm.issue(f"buffer_load_dwordx4 {v(r+4,4)}, v9, s[8:11], s38 offen offset:256 {ld}", ("o", h))
    def wreads(h):
        sn = h & 1
        return [(f"ds_read_b64_tr_b16 {v(WFR+16*sn+4*n+2*x,2)}, v{WA+n} offset:{h*4096+x*1024}", ("w", h, n))
                for n in range(4) for x in range(2)]
    for h in range(LA): oload(h)
    post_yloads(a, vm)
    for t, g in wreads(0): lg.issue(t, g)
    started = False
    for h in range(16):
        nr = wreads(h + 1) if h + 1 < 16 else []
        vm.need(("o", h))
        for n in range(4):
            for u in range(2):
                if u == 0: lg.need(("w", h, n))
                acc = v(ACC + 4 * (4 * u + n), 4)
                a(f"v_mfma_f32_16x16x32_bf16 {acc}, {v(WFR+16*(h&1)+4*n,4)}, {v(OF+8*(h%NOF)+4*u,4)}, {acc if started else '0'}")
                if nr:
                    t, g = nr.pop(0); lg.issue(t, g)
        started = True
        if h + LA < 16: oload(h + LA)
        if h == opt("posth", 9): post_fin(a, vm)
    stamp(a, 11)
    RS = 272
    a("v_and_b32 v2, 15, v0")
    a("v_lshrrev_b32 v3, 4, v0")
    a("s_lshl_b32 s36, s26, 5")
    a("s_lshl_b32 s37, s27, 7")
    a("s_add_u32 s36, s36, s37")
    a("v_add_u32 v2, s36, v2")
    a(f"v_mul_u32_u24 v2, {RS}, v2")
    a("v_lshl_add_u32 v2, v3, 4, v2")
    a("s_barrier")
    for u in range(2):
        for n in range(4):
            a(f"ds_write_b128 v2, {v(ACC+4*(4*u+n),4)} offset:{1024+u*16*RS+n*64}")
    a("v_lshrrev_b32 v3, 3, v0")
    a("s_lshl_b32 s36, s3, 4")
    a("v_add_u32 v3, s36, v3")
    a("v_and_b32 v4, 7, v0")
    a(f"v_mul_u32_u24 v5, {RS}, v3")
    a("v_lshl_add_u32 v5, v4, 5, v5")
    a("s_lshl_b32 s36, s56, 7")
    a("v_add_u32 v3, s36, v3")
    a("v_lshlrev_b32 v3, 12, v3")
    a("v_lshl_add_u32 v3, v4, 4, v3")
    a("s_lshl_b32 s36, s57, 7")
    a("s_add_u32 s36, s36, 2048")
    a(f"s_add_u32 s37, s36, {8*4096}")
    a("s_waitcnt lgkmcnt(0)")
    a("s_barrier")
    for it in range(2):
        for kh in range(2):
            for x in range(2):
                a(f"ds_read_b128 {v(16+16*it+8*kh+4*x,4)}, v5 offset:{1024+it*8*RS+kh*128*RS+16*x}")
    for it in range(2):
        a(f"s_waitcnt lgkmcnt({4*(1-it)})")
        b = 16 + 16 * it
        for e in range(8): a(f"v_add_f32 v{b+e}, v{b+e}, v{b+8+e}")
        for p in range(4): a(f"v_cvt_pk_bf16_f32 v{48+4*it+p}, v{b+2*p}, v{b+2*p+1}")
        a(f"buffer_store_dwordx4 {v(48+4*it,4)}, v3, s[16:19], s{36+it} offen {opt('outst','')}")

KNAME = "concat_heads__ssm_conv_h3__sliding_block__prompt_kernel"
def gen():
    a = Asm()
    a("s_cmp_ge_u32 s2, 256")
    a("s_cbranch_scc1 mk_end")
    a("s_load_dwordx16 s[76:91], s[0:1], 0")
    a("s_load_dwordx8 s[92:99], s[0:1], 64")
    a("v_lshrrev_b32 v1, 6, v0")
    a("v_and_b32 v0, 63, v0")
    a("v_readfirstlane_b32 s3, v1")
    if DIAG:
        a("v_mov_b32 v255, 0")
        stamp(a, 0)
    if opt("cpf", 1):
        a("s_getpc_b64 s[4:5]")
        a("s_lshr_b32 s6, s2, 3")
        a("s_lshl_b32 s6, s6, 3")
        a("s_add_u32 s6, s6, s3")
        a("s_and_b32 s6, s6, 63")
        a(f"s_min_u32 s6, s6, ((mk_code_end - {KNAME} - 1152) >> 10)")
        a("s_lshl_b32 s6, s6, 10")
        a("v_lshl_add_u32 v1, v0, 4, s6")
        a("global_load_dwordx4 v[24:27], v1, s[4:5]")
    g1_decode(a)
    a("s_cmp_ge_u32 s3, 4")
    a("s_cbranch_scc1 mk_loader")
    g1_consumer(a)
    att_decode(a)
    lds_wait(a, C_G1, 4, 4, 5)
    att_stage(a)
    a("s_branch mk_att")
    a.label("mk_loader")
    vm = g1_loader(a)
    stamp(a, 1)
    conv_main(a, vm)
    att_decode(a)
    lds_wait(a, C_G1OK, 1, 4, 5)
    stamp(a, 5)
    a.label("mk_att")
    srd(a, 8, "ws", 4 * MB, WS_Q)
    srd(a, 16, "ws", 4 * MB, WS_O)
    a("s_lshl_b32 s26, s25, 5")
    a("s_add_u32 s26, s26, s24")
    a("s_lshl_b32 s27, s26, 11")
    ld = opt('ld', '')
    a(f"buffer_load_dwordx4 v[8:11], v1, s[8:11], s27 offen {ld}")
    a(f"buffer_load_dwordx4 v[12:15], v1, s[8:11], s27 offen offset:512 {ld}")
    stamp(a, 12)
    att_setup(a)
    g2_decode(a)
    stamp(a, 13)
    a("s_cmp_ge_u32 s3, 4")
    a("s_cbranch_scc1 mk_nok")
    a("s_waitcnt vmcnt(10)")
    stamp(a, 14)
    lds_add(a, C_K, 5, 6)
    a.label("mk_nok")
    wl = [w_piece(a, p8) for p8 in range(5, 11)] + [lambda: lds_wait(a, C_CONV, 4, 5, 6)] + [w_piece(a, p8) for p8 in range(11, 16)]
    ool = att_fast(a, wl)
    stamp(a, 7)
    a("s_lshl_b32 s38, s30, 5")
    a("s_add_u32 s38, s38, s24")
    a("s_lshl_b32 s38, s38, 2")
    a(f"s_add_u32 s38, s38, {FL_ATT}")
    a("s_waitcnt vmcnt(0)")
    signal(a, C_ATT, 8, 38, 4, 5)
    a("s_barrier")
    stamp(a, 8)
    for p8 in range(5): w_piece(a, p8)()
    post_pre(a)
    stamp(a, 9)
    gemm2(a)
    stamp_flush(a)
    a.label("mk_end")
    a("s_endpgm")
    ool()
    a.label("mk_code_end")
    return kernel_text(KNAME, a, 256)

HEADER = open("concat_heads__ssm_conv_h3__sliding_block__prompt.s.ref").read().split("; Override")[0]
if __name__ == "__main__":
    DIAG = "--diag" in sys.argv
    for x in sys.argv[2:]:
        if "=" in x:
            k_, v_ = x.split("=")
            OPT[k_] = int(v_) if v_.lstrip("-").isdigit() else v_.replace("+", " ").replace("none", "")
    code, kd = gen()
    out = HEADER + f"; @launch grid=(256,1,1) block=(512,1,1) lds={LDS_TOTAL}\n"
    out += '.amdgcn_target "amdgcn-amd-amdhsa--gfx950"\n.text\n' + code + '.section .rodata,"a"\n.p2align 6\n' + kd
    open(sys.argv[1], "w").write(out)
```
